```python
import torch

def _softmax(x, axis=-1):
    return torch.softmax(x, dim=axis)
def _gelu(x):
    return torch.nn.functional.gelu(x, approximate="tanh")
def _silu(x):
    return torch.nn.functional.silu(x)
def _sigmoid(x):
    return torch.sigmoid(x)
def _layernorm(x, axis=-1, eps=1e-5):
    m = x.mean(dim=axis, keepdim=True)
    v = x.var(dim=axis, keepdim=True, unbiased=False)
    return (x - m) / torch.sqrt(v + eps)
def _scatter_add(tgt, idx, src, axis=0):
    return tgt.clone().index_add_(axis, idx, src)
def _segment_sum(src, seg, n):
    out = torch.zeros((n,) + src.shape[1:], dtype=src.dtype)
    return out.index_add_(0, seg, src)
def _pad(x, pw):
    flat = tuple(v for pair in reversed(pw) for v in pair)
    return torch.nn.functional.pad(x, flat)

kernel_name = 'recurrent_scan__ssm_conv_s5__glu_gated_geglu__prompt'

def setup_inputs():

    _w = (lambda a: (lambda t: t.to(torch.bfloat16) if t.is_floating_point() else t)(torch.as_tensor(a)))
    def _A_setup():
        B, S, D = 1, 2048, 1024
        P = D
        Lambda_re = -0.5 * (lambda _x: torch.exp(torch.as_tensor(_x)))((lambda *s: torch.randn(*s, dtype=torch.bfloat16) * 0.8)(P))
        Lambda_im = (lambda *s: torch.randn(*s, dtype=torch.bfloat16) * 0.8)(P) * 1.0
        B_re = (lambda *s: torch.randn(*s, dtype=torch.bfloat16) * 1.6)(P, D) * (D ** -0.5)
        B_im = (lambda *s: torch.randn(*s, dtype=torch.bfloat16) * 1.6)(P, D) * (D ** -0.5)
        C_re = (lambda *s: torch.randn(*s, dtype=torch.bfloat16) * 1.6)(D, P) * (P ** -0.5)
        C_im = (lambda *s: torch.randn(*s, dtype=torch.bfloat16) * 1.6)(D, P) * (P ** -0.5)
        log_dt = (lambda *s: torch.randn(*s, dtype=torch.bfloat16) * 0.8)(P) * 0.3 - 2.0
        Dskip = (lambda *s: torch.randn(*s, dtype=torch.bfloat16) * 0.8)(D)
        return {
            "x": _w((lambda *s: torch.randn(*s, dtype=torch.bfloat16) * 0.05)(B, S, D)),
            "Lambda_re": _w(Lambda_re),
            "Lambda_im": _w(Lambda_im),
            "B_re": _w(B_re),
            "B_im": _w(B_im),
            "C_re": _w(C_re),
            "C_im": _w(C_im),
            "log_dt": _w(log_dt),
            "Dskip": _w(Dskip),
        }
    _A_in = _A_setup()

    def _B_setup():
        B, S, Dm, Df = 1, 2048, 1024, 3584
        return {
            "x": _w((lambda *s: torch.randn(*s, dtype=torch.bfloat16) * 0.05)(B, S, Dm)),
            "w_gate": _w((lambda *s: torch.randn(*s, dtype=torch.bfloat16) * 0.2)(Dm, Df) * (Dm ** -0.5)),
            "w_up": _w((lambda *s: torch.randn(*s, dtype=torch.bfloat16) * 0.2)(Dm, Df) * (Dm ** -0.5)),
            "w_down": _w((lambda *s: torch.randn(*s, dtype=torch.bfloat16) * 0.2)(Df, Dm) * (Df ** -0.5)),
        }
    _B_in = _B_setup()

    return {
        "A_x": _A_in["x"],
        "A_Lambda_re": _A_in["Lambda_re"],
        "A_Lambda_im": _A_in["Lambda_im"],
        "A_B_re": _A_in["B_re"],
        "A_B_im": _A_in["B_im"],
        "A_C_re": _A_in["C_re"],
        "A_C_im": _A_in["C_im"],
        "A_log_dt": _A_in["log_dt"],
        "A_Dskip": _A_in["Dskip"],
        "B_x": _B_in["x"],
        "B_w_gate": _B_in["w_gate"],
        "B_w_up": _B_in["w_up"],
        "B_w_down": _B_in["w_down"],
    }

def reference(A_x, A_Lambda_re, A_Lambda_im, A_B_re, A_B_im, A_C_re, A_C_im, A_log_dt, A_Dskip, B_x, B_w_gate, B_w_up, B_w_down):
    def _A_ref(x, Lambda_re, Lambda_im, B_re, B_im, C_re, C_im, log_dt, Dskip):
        Bsz, L, H = x.shape
        Lam = Lambda_re + 1j * Lambda_im
        Bmat = B_re + 1j * B_im
        Cmat = C_re + 1j * C_im
        dt = torch.exp(log_dt)
        Lam_bar = torch.exp(dt * Lam)
        B_bar = ((Lam_bar - 1.0) / Lam)[:, None] * Bmat
        Bu = torch.einsum("bld,pd->blp", x + 0j, B_bar)
        h = torch.zeros_like(Bu[:, 0, :])
        hs = []
        for t in range(L):
            h = Lam_bar[None, :] * h + Bu[:, t, :]
            hs.append(h)
        hseq = torch.stack(hs, 1)
        y = 2.0 * torch.einsum("blp,dp->bld", hseq, Cmat).real + x * Dskip[None, None, :]
        return y

    def _B_ref(x, w_gate, w_up, w_down):
        g = torch.einsum("bsd,df->bsf", x, w_gate)
        u = torch.einsum("bsd,df->bsf", x, w_up)
        h = _gelu(g) * u
        return torch.einsum("bsf,fd->bsd", h, w_down)

    x = A_x
    xn = _layernorm(x, axis=-1)
    s = _A_ref(xn, A_Lambda_re, A_Lambda_im, A_B_re, A_B_im, A_C_re, A_C_im, A_log_dt, A_Dskip)
    g = _silu(_B_ref(xn, B_w_gate, B_w_up, B_w_down))
    return x + s * g
```

```python
import re

def regs_of(tok):
    tok = tok.strip()
    if tok.startswith('-'): tok = tok[1:]
    m = re.fullmatch(r'abs\((.*)\)', tok)
    if m: tok = m.group(1)
    m = re.fullmatch(r'\|(.*)\|', tok)
    if m: tok = m.group(1)
    m = re.fullmatch(r'([vsa])(\d+)', tok)
    if m: return [(m.group(1), int(m.group(2)))]
    m = re.fullmatch(r'([vsa])\[(\d+):(\d+)\]', tok)
    if m: return [(m.group(1), i) for i in range(int(m.group(2)), int(m.group(3)) + 1)]
    if tok in ('vcc', 'vcc_lo', 'vcc_hi'): return [('vcc', 0)]
    if tok in ('exec', 'exec_lo', 'exec_hi'): return [('exec', 0)]
    if tok == 'm0': return [('m0', 0)]
    return []

TRANS = ('v_exp_f32', 'v_log_f32', 'v_rcp_f32', 'v_rsq_f32', 'v_sqrt_f32', 'v_sin_f32', 'v_cos_f32')

class Ins:
    def __init__(self, text):
        self.text = text
        t = text.split(';')[0].strip()
        parts = t.split(None, 1)
        self.op = parts[0]
        rest = parts[1] if len(parts) > 1 else ''
        ops = []
        depth = 0; cur = ''
        for ch in rest:
            if ch in '[(': depth += 1
            if ch in '])': depth -= 1
            if ch == ',' and depth == 0:
                ops.append(cur.strip()); cur = ''
            else:
                cur += ch
        if cur.strip(): ops.append(cur.strip())
        mods = ''
        if ops:
            sp = ops[-1].split(None, 1)
            ops[-1] = sp[0]
            mods = sp[1] if len(sp) > 1 else ''
        self.ops = ops; self.mods = mods
        op = self.op
        self.is_mfma = op.startswith('v_mfma')
        self.is_valu = op.startswith('v_') and not self.is_mfma
        self.is_trans = any(op.startswith(x) for x in TRANS)
        self.is_salu = op.startswith('s_')
        self.is_vmem = op.startswith('buffer_') or op.startswith('global_')
        self.is_ds = op.startswith('ds_')
        self.is_dpp = '_dpp' in op or 'quad_perm' in mods or 'row_' in mods
        self.is_perm = op.startswith('v_permlane')
        self.w = []; self.r = []
        R = [regs_of(o) for o in ops]
        if self.is_mfma:
            self.w = R[0]; self.r = R[1] + R[2] + R[3]; self.srcc = R[3]; self.srcab = R[1] + R[2]
        elif self.is_valu:
            if op.startswith('v_cmp'):
                self.w = R[0]; self.r = sum(R[1:], [])
                if op.startswith('v_cmpx'): self.w = self.w + [('exec', 0)]
            elif self.is_perm and 'swap' in op:
                self.w = R[0] + R[1]; self.r = R[0] + R[1]
            elif op.startswith(('v_add_co', 'v_sub_co', 'v_addc_co', 'v_subb_co')):
                self.w = R[0] + R[1]; self.r = sum(R[2:], [])
            elif op.startswith('v_nop'):
                pass
            else:
                self.w = R[0]; self.r = sum(R[1:], [])
                if op.startswith(('v_fmac', 'v_dot2c', 'v_pk_fmac')) or self.is_dpp: self.r = self.r + R[0]
        elif self.is_vmem:
            lds = ' lds' in (' ' + mods)
            if 'store' in op or 'atomic' in op:
                self.r = sum(R, []); self.store_data = R[0] if op.startswith('buffer_') else R[1]
                if 'atomic' in op and 'sc0' in mods: self.w = R[0]
            elif lds:
                self.r = sum(R, []) + [('m0', 0)]
            elif op in ('buffer_wbl2', 'buffer_inv'):
                pass
            else:
                self.w = R[0]; self.r = sum(R[1:], [])
            self.lds = lds
        elif self.is_ds:
            if 'write' in op:
                self.r = sum(R, [])
            else:
                self.w = R[0]; self.r = sum(R[1:], [])
        elif self.is_salu:
            if op.startswith(('s_cmp', 's_cbranch', 's_branch', 's_waitcnt', 's_barrier', 's_nop', 's_endpgm', 's_setprio', 's_sleep', 's_bitcmp')):
                self.r = sum(R, [])
            else:
                self.w = R[0] if R else []; self.r = sum(R[1:], [])
                if 'saveexec' in op: self.w = self.w + [('exec', 0)]
    def states(self):
        if self.op == 's_nop': return int(self.ops[0], 0) + 1
        return 1
    def passes(self):
        return 4 if '16x16x32' in self.op else 8

def need(p, c):
    n = 0
    pw = set(p.w); cr = set(c.r); cw = set(c.w)
    pwv = {x for x in pw if x[0] in 'va' and x[0] != 'vcc'}
    pws = {x for x in pw if x[0] == 's' or x[0] == 'vcc'}
    if p.is_valu:
        if c.is_mfma and pwv & cr: n = max(n, 2)
        if c.is_valu and c.is_dpp and pwv & cr: n = max(n, 2)
        if c.is_perm and pwv & cr: n = max(n, 2)
        if c.op.startswith(('v_readfirstlane', 'v_readlane')) and pwv & cr: n = max(n, 1)
        if p.is_trans and c.is_valu and not c.is_trans and pwv & cr: n = max(n, 1)
        if p.is_trans and (c.is_mfma) and pwv & cr: n = max(n, 2)
        if pws:
            if c.is_vmem and pws & cr: n = max(n, 5)
            if c.is_valu and pws & cr: n = max(n, 2)
            if c.is_valu and c.op.startswith('v_cndmask') and ('vcc', 0) in pws: n = max(n, 2)
            if c.op.startswith(('v_readlane', 'v_writelane')) and pws & cr: n = max(n, 4)
            if c.is_salu and pws & cr: n = max(n, 4)
            if c.op.startswith('s_cbranch_vcc') and ('vcc', 0) in pws: n = max(n, 5)
        if ('exec', 0) in pw:
            if c.is_mfma: n = max(n, 4)
            if c.is_dpp: n = max(n, 5)
            if c.is_perm or c.op.startswith(('v_readfirstlane', 'v_readlane')): n = max(n, 4)
    if p.is_salu and ('m0', 0) in pw and ('m0', 0) in cr and c.is_vmem: n = max(n, 1)
    if p.is_mfma:
        ps = p.passes()
        d = set(p.w)
        if c.is_mfma:
            if d & set(c.srcab): n = max(n, {4: 8, 8: 12}[ps])
            if d & set(c.srcc) and set(c.srcc) != d: n = max(n, {4: 6, 8: 10}[ps])
        else:
            if d & (cr | cw): n = max(n, {4: 8, 8: 12}[ps])
            if c.is_valu and set(p.srcc) & cw: n = max(n, {4: 3, 8: 7}[ps])
    if p.is_vmem and ('store' in p.op) and ('x4' in p.op or 'x3' in p.op):
        if set(p.store_data) & cw: n = max(n, 2 if c.is_valu else 1)
    return n

class Asm:
    def __init__(self):
        self.lines = []
        self.hist = []
    def raw(self, s):
        self.lines.append(s)
    def label(self, name):
        self.lines.append(name + ':')
    def reset(self):
        self.hist = []
    def __call__(self, s):
        for line in s.split('\n'):
            line = line.strip()
            if not line or line.startswith(';'):
                if line: self.lines.append('    ' + line)
                continue
            if line.endswith(':') or line.startswith('.'):
                self.lines.append(line); continue
            ins = Ins(line)
            dist = 0; pad = 0
            for p in reversed(self.hist):
                nd = need(p, ins)
                if nd > dist: pad = max(pad, nd - dist)
                dist += p.states()
                if dist > 20: break
            if pad:
                nop = Ins(f's_nop {pad-1}')
                self.lines.append(f'    s_nop {pad-1}')
                self.hist.append(nop)
            self.lines.append('    ' + line)
            self.hist.append(ins)
            if len(self.hist) > 40: self.hist = self.hist[-30:]
    def text(self):
        return '\n'.join(self.lines) + '\n'
```

```python
import sys, math, struct
from asmlib import Asm

P = dict(stamp=0, X=16, only=0)
for a in sys.argv[1:]:
    k, v = a.split('='); P[k] = int(v)
STAMP = P['stamp']; XO = P['X']

def f2u(x): return struct.unpack('<I', struct.pack('<f', x))[0]
def fh(x): return '0x%08x' % f2u(x)

MB = 1 << 20
WS_XN = 0
WS_STATS = 4 * MB
WS_TBUF = 4 * MB + 65536
WS_FLAGS = 4 * MB + 196608
WS_ACT = 8 * MB
WS_OBUF = 32 * MB
WS_STAMP = 48 * MB
WS_SIZE = 64 * MB
LOG2E = 1.4426950408889634

A = Asm()

def header():
    A.raw("; S5 SSM + GEGLU block: LN -> G1 (Bu GEMM + scan, gate/up GEMM + GEGLU) -> G2 (C GEMM, down GEMM, combine)")
    A.raw("; @launch kernel=k1_ln_kernel grid=(256,1,1) block=(256,1,1) lds=1024")
    if P['only'] != 1:
        A.raw("; @launch kernel=k2_g1_kernel grid=(256,1,1) block=(512,1,1) lds=140288")
    if P['only'] == 0:
        A.raw("; @launch kernel=k3_g2_kernel grid=(256,1,1) block=(512,1,1) lds=131072")
    A.raw('.amdgcn_target "amdgcn-amd-amdhsa--gfx950"')
    A.raw('.text')

def kstart(name):
    A.raw(f'.globl {name}\n.p2align 8\n.type {name},@function\n{name}:')
    A.reset()

def kdesc(name, vgpr, sgpr):
    A.raw(f'''.p2align 6
.amdhsa_kernel {name}
  .amdhsa_next_free_vgpr {vgpr}
  .amdhsa_next_free_sgpr {sgpr}
  .amdhsa_accum_offset {(vgpr+3)//4*4}
  .amdhsa_group_segment_fixed_size 0
  .amdhsa_kernarg_size 128
  .amdhsa_user_sgpr_count 2
  .amdhsa_user_sgpr_kernarg_segment_ptr 1
  .amdhsa_system_sgpr_workgroup_id_x 1
.end_amdhsa_kernel''')

def srd(d, b, size):
    A(f"s_mov_b32 s{d}, s{b}\ns_and_b32 s{d+1}, s{b+1}, 0xffff\ns_mov_b32 s{d+2}, {size}\ns_mov_b32 s{d+3}, 0x20000")

def stamp(slot, kid, tmpv, cond_wave_sgpr=None, wave=0, sp=80):
    if not STAMP: return
    lab = f"Lst_{kid}_{slot}_{len(A.lines)}"
    if cond_wave_sgpr is not None:
        A(f"s_cmp_lg_u32 s{cond_wave_sgpr}, {wave}\ns_cbranch_scc1 {lab}")
    A(f"s_memrealtime s[{sp}:{sp+1}]\ns_waitcnt lgkmcnt(0)")
    A(f"s_lshl_b32 s{sp+2}, s2, 7\ns_add_u32 s{sp+2}, s{sp+2}, {WS_STAMP + kid*256*128 + slot*8}")
    A(f"v_mov_b32 v{tmpv}, s{sp}\nv_mov_b32 v{tmpv+1}, s{sp+1}\nv_mov_b32 v{tmpv+2}, 0")
    A(f"buffer_store_dwordx2 v[{tmpv}:{tmpv+1}], v{tmpv+2}, s[8:11], s{sp+2} offen")
    A(f"{lab}:")

def k1():
    kstart('k1_ln_kernel')
    A("s_cmp_ge_u32 s2, 256\ns_cbranch_scc1 L1_end")
    A("s_load_dwordx2 s[4:5], s[0:1], 0\ns_load_dwordx2 s[6:7], s[0:1], 120")
    A("v_and_b32 v1, 63, v0\nv_lshrrev_b32 v2, 6, v0")
    A("s_and_b32 s20, s2, 1\ns_bfe_u32 s21, s2, 0x20001\ns_bfe_u32 s22, s2, 0x20003\ns_lshr_b32 s23, s2, 5")
    A("v_lshrrev_b32 v3, 3, v1\ns_lshl_b32 s24, s20, 3\nv_add_u32 v3, s24, v3")
    A("v_and_b32 v4, 7, v1")
    A("s_lshl_b32 s24, s23, 8\ns_lshl_b32 s25, s22, 6\ns_add_u32 s24, s24, s25\ns_lshl_b32 s25, s21, 2\ns_add_u32 s24, s24, s25")
    A("v_lshrrev_b32 v5, 2, v3\nv_lshlrev_b32 v5, 4, v5\nv_and_b32 v6, 3, v3\nv_add3_u32 v5, v5, v6, s24")
    A("v_lshlrev_b32 v6, 11, v5\nv_lshlrev_b32 v7, 9, v2\nv_lshlrev_b32 v8, 4, v4\nv_add3_u32 v6, v6, v7, v8")
    A("s_lshl_b32 s25, s23, 19\ns_lshl_b32 s26, s22, 12\ns_add_u32 s25, s25, s26\ns_lshl_b32 s26, s21, 10\ns_add_u32 s25, s25, s26")
    A("v_lshlrev_b32 v7, 17, v2\nv_lshrrev_b32 v8, 2, v4\nv_lshlrev_b32 v8, 14, v8\nv_add3_u32 v7, v7, v8, s25")
    A("v_and_b32 v8, 3, v4\nv_lshlrev_b32 v8, 8, v8\nv_lshlrev_b32 v9, 4, v3\nv_add3_u32 v7, v7, v8, v9")
    A("s_waitcnt lgkmcnt(0)")
    srd(12, 4, 4 * MB); srd(8, 6, WS_SIZE)
    for j in range(4):
        A(f"buffer_load_dwordx4 v[{16+4*j}:{19+4*j}], v6, s[12:15], 0 offen offset:{128*j}")
    stamp(0, 0, 70)
    A(f"s_lshl_b32 s26, s2, 8\ns_add_u32 s26, s26, {WS_TBUF}\ns_lshl_b32 s27, s2, 5\ns_add_u32 s27, s27, {WS_FLAGS}")
    A("v_lshlrev_b32 v10, 2, v0\nv_mov_b32 v11, -1\nv_mov_b32 v12, 0")
    A("v_cmp_gt_u32 vcc, 64, v0\ns_and_saveexec_b64 s[28:29], vcc\ns_cbranch_execz L1_a")
    A("buffer_store_dword v11, v10, s[8:11], s26 offen")
    A("v_cmp_gt_u32 vcc, 8, v0\ns_and_b64 exec, exec, vcc")
    A("buffer_store_dword v12, v10, s[8:11], s27 offen")
    A("L1_a:\ns_mov_b64 exec, s[28:29]")
    A("s_waitcnt vmcnt(0)")
    for d in range(16):
        A(f"v_lshlrev_b32 v{32+2*d}, 16, v{16+d}\nv_and_b32 v{33+2*d}, 0xffff0000, v{16+d}")
    def tree(dst, fn):
        pass
    A("v_add_f32 v64, v32, v33\nv_add_f32 v65, v34, v35\nv_add_f32 v66, v36, v37\nv_add_f32 v67, v38, v39")
    for e in range(8, 32, 4):
        for r in range(4): A(f"v_add_f32 v{64+r}, v{64+r}, v{32+e+r}")
    A("v_add_f32 v64, v64, v65\nv_add_f32 v66, v66, v67\nv_add_f32 v64, v64, v66")
    def red8(v):
        A(f"v_add_f32_dpp v{v}, v{v}, v{v} quad_perm:[1,0,3,2] row_mask:0xf bank_mask:0xf")
        A(f"v_add_f32_dpp v{v}, v{v}, v{v} quad_perm:[2,3,0,1] row_mask:0xf bank_mask:0xf")
        A(f"v_add_f32_dpp v{v}, v{v}, v{v} row_half_mirror row_mask:0xf bank_mask:0xf")
    red8(64)
    A(f"v_mul_f32 v68, {fh(1/256)}, v64")
    for r in range(4):
        A(f"v_sub_f32 v69, v{32+r}, v68\nv_mul_f32 v{72+r}, v69, v69")
    for e in range(4, 32):
        A(f"v_sub_f32 v{76+(e&3)}, v{32+e}, v68\nv_fmac_f32 v{72+(e&3)}, v{76+(e&3)}, v{76+(e&3)}")
    A("v_add_f32 v72, v72, v73\nv_add_f32 v74, v74, v75\nv_add_f32 v69, v72, v74")
    red8(69)
    A("v_lshrrev_b32 v70, 3, v1\nv_lshlrev_b32 v70, 5, v70\nv_lshl_add_u32 v71, v2, 3, v70")
    A("ds_write_b64 v71, v[68:69]\ns_waitcnt lgkmcnt(0)\ns_barrier")
    A("ds_read_b128 v[72:75], v70\nds_read_b128 v[76:79], v70 offset:16\ns_waitcnt lgkmcnt(0)")
    A("v_add_f32 v64, v72, v74\nv_add_f32 v65, v76, v78\nv_add_f32 v64, v64, v65\nv_mul_f32 v64, 0.25, v64".replace("0.25", fh(0.25)))
    A("v_add_f32 v65, v73, v75\nv_add_f32 v66, v77, v79\nv_add_f32 v65, v65, v66")
    A("v_sub_f32 v72, v72, v64\nv_sub_f32 v74, v74, v64\nv_sub_f32 v76, v76, v64\nv_sub_f32 v78, v78, v64")
    A("v_mul_f32 v66, v72, v72\nv_fmac_f32 v66, v74, v74\nv_fmac_f32 v66, v76, v76\nv_fmac_f32 v66, v78, v78")
    A(f"v_mul_f32 v65, {fh(1/1024)}, v65\nv_fmac_f32 v65, {fh(0.25)}, v66")
    A("v_cvt_pk_bf16_f32 v66, v64, v65\nv_lshlrev_b32 v64, 16, v66\nv_and_b32 v65, 0xffff0000, v66")
    A(f"v_add_f32 v65, {fh(1e-5)}, v65\nv_cvt_pk_bf16_f32 v65, v65, v65\nv_and_b32 v65, 0xffff0000, v65")
    A("v_sqrt_f32 v65, v65\nv_cvt_pk_bf16_f32 v65, v65, v65\nv_and_b32 v65, 0xffff0000, v65\nv_rcp_f32 v65, v65")
    for d in range(16):
        a, b = 32 + 2*d, 33 + 2*d
        A(f"v_sub_f32 v{a}, v{a}, v64\nv_sub_f32 v{b}, v{b}, v64\nv_cvt_pk_bf16_f32 v{16+d}, v{a}, v{b}")
    for d in range(16):
        a, b = 32 + 2*d, 33 + 2*d
        A(f"v_lshlrev_b32 v{a}, 16, v{16+d}\nv_and_b32 v{b}, 0xffff0000, v{16+d}")
        A(f"v_mul_f32 v{a}, v{a}, v65\nv_mul_f32 v{b}, v{b}, v65\nv_cvt_pk_bf16_f32 v{16+d}, v{a}, v{b}")
    for j in range(4):
        A(f"s_mov_b32 s26, {WS_XN + 32768*j}")
        A(f"buffer_store_dwordx4 v[{16+4*j}:{19+4*j}], v7, s[8:11], s26 offen")
    A(f"v_lshlrev_b32 v5, 3, v5\ns_mov_b32 s26, {WS_STATS}")
    A("v_and_b32 v8, 0xc7, v0\nv_cmp_eq_u32 vcc, 0, v8\ns_and_saveexec_b64 s[28:29], vcc\ns_cbranch_execz L1_b")
    A("buffer_store_dwordx2 v[64:65], v5, s[8:11], s26 offen")
    A("L1_b:\ns_mov_b64 exec, s[28:29]")
    stamp(1, 0, 70)
    A("L1_end:\ns_endpgm")

class LQ:
    def __init__(self): self.n = 0; self.tag = {}; self.done = 0
    def issue(self, tag, text):
        A(text); self.n += 1; self.tag[tag] = self.n
    def wait(self, *tags):
        need = max(self.tag[t] for t in tags)
        if need <= self.done: return
        c = self.n - need
        assert c <= 15
        A(f"s_waitcnt lgkmcnt({c})"); self.done = need
    def all_done(self): self.done = self.n
    def forget(self): self.done = 0

SLOT1 = 34816
OFF_WG, OFF_WU, OFF_B = 16384, 23552, 30720
G1_SCR = 4 * SLOT1
ACC = 96; AFR = 16; BFR = 48
def acc(b, i): return ACC + (b * 4 + i) * 4

def gelu_pair(bg, bu, T, soff):
    outs = [T + 12, T + 16]
    for h in range(2):
        O = T + 8 + 4 * h + 8 * (soff & 1) * 0
        for ii in range(2):
            i = 2 * h + ii
            g = acc(bg, i); u = acc(bu, i)
            for r in range(4): A(f"v_mul_f32 v{T+r}, v{g+r}, v{g+r}")
            for r in range(4): A(f"v_fma_f32 v{T+r}, v{T+r}, s40, v{T+20}")
            for r in range(4): A(f"v_mul_f32 v{T+r}, v{T+r}, v{g+r}")
            for r in range(4): A(f"v_exp_f32 v{T+r}, v{T+r}")
            for r in range(4): A(f"v_mul_f32 v{T+4+r}, v{g+r}, v{u+r}")
            for r in range(4): A(f"v_add_f32 v{T+r}, 1.0, v{T+r}")
            for r in range(4): A(f"v_rcp_f32 v{T+r}, v{T+r}")
            for r in range(4): A(f"v_mul_f32 v{T+4+r}, v{T+4+r}, v{T+r}")
            o = acc(bg, 2 * h)
            if ii == 0:
                A(f"v_cvt_pk_bf16_f32 v{o}, v{T+4}, v{T+5}\nv_cvt_pk_bf16_f32 v{o+1}, v{T+6}, v{T+7}")
            else:
                A(f"v_cvt_pk_bf16_f32 v{o+2}, v{T+4}, v{T+5}\nv_cvt_pk_bf16_f32 v{o+3}, v{T+6}, v{T+7}")
        o = acc(bg, 2 * h)
        A(f"buffer_store_dwordx4 v[{o}:{o+3}], v{10+h}, s[8:11], s{soff} offen")

def cmul_add(dr, di, ar, ai, br, bi, cr, ci, t0, t1):
    A(f"v_fma_f32 v{t0}, v{ar}, v{br}, v{cr}\nv_fma_f32 v{t1}, v{ar}, v{bi}, v{ci}")
    A(f"v_fma_f32 v{t0}, -v{ai}, v{bi}, v{t0}\nv_fma_f32 v{di}, v{ai}, v{br}, v{t1}\nv_mov_b32 v{dr}, v{t0}")

def g1_loop(kind):
    NBLK = 10 if kind == 0 else 8
    NBUF = 5 if kind == 0 else 8
    BAR = NBLK - 3
    ND = 4 if kind == 0 else 5
    q = LQ()
    def bfr(b): return BFR + (b % NBUF) * 4
    def rd_A(slot, par):
        out = []
        for i in range(4):
            f = AFR + par * 16 + i * 4
            out.append((('A', par, i), f"ds_read_b128 v[{f}:{f+3}], v{4+(slot>>1)} offset:{(slot&1)*SLOT1 + i*1024}"))
        return out
    def rd_B(slot, b):
        f = bfr(b); so = (slot & 1) * SLOT1
        if kind == 0 or b < 4:
            j = (b >> 1) + (0 if kind == 0 else 5)
            off = so + (b & 1) * 7168 + 32 * j
            return [(('B', b, 0), f"ds_read_b64_tr_b16 v[{f}:{f+1}], v{6+(slot>>1)} offset:{off}"),
                    (('B', b), f"ds_read_b64_tr_b16 v[{f+2}:{f+3}], v{6+(slot>>1)} offset:{off+1792}")]
        else:
            idx = ((b - 4) & 1) * 2 + ((b - 4) >> 1)
            return [(('B', b), f"ds_read_b128 v[{f}:{f+3}], v{8+(slot>>1)} offset:{so + idx*1024}")]
    def dma(slot):
        base = slot * SLOT1
        if kind == 0:
            return [[f"s_add_u32 m0, s22, {base + OFF_WG}", "buffer_load_dwordx4 v2, s[12:15], s20 offen lds"],
                    ["s_mov_b64 exec, s[30:31]", "buffer_load_dwordx4 v3, s[12:15], s20 offen offset:1024 lds", "s_mov_b64 exec, -1"],
                    [f"s_add_u32 m0, s22, {base + OFF_WU}", "buffer_load_dwordx4 v2, s[16:19], s20 offen lds"],
                    ["s_mov_b64 exec, s[30:31]", "buffer_load_dwordx4 v3, s[16:19], s20 offen offset:1024 lds", "s_mov_b64 exec, -1", "s_add_u32 s20, s20, 229376"]]
        else:
            return [[f"s_add_u32 m0, s22, {base}", "buffer_load_dwordx4 v2, s[8:11], s20 offen lds"],
                    ["buffer_load_dwordx4 v2, s[8:11], s20 offen offset:1024 lds"],
                    ["buffer_load_dwordx4 v2, s[8:11], s20 offen offset:2048 lds"],
                    ["buffer_load_dwordx4 v2, s[8:11], s20 offen offset:3072 lds", "s_add_u32 s20, s20, 16384"],
                    [f"s_add_u32 m0, s23, {base + OFF_B}", "buffer_load_dwordx4 v3, s[12:15], s21 offen lds", "s_add_u32 s21, s21, 64"]]
    def prologue_dma():
        for s in range(4):
            for grp in dma(s):
                for x in grp: A(x)
    def first_reads():
        for t, x in rd_A(0, 0) + rd_B(0, 0) + rd_B(0, 1) + rd_B(0, 2) + rd_B(0, 3): q.issue(t, x)
    def stage(slot, do_dma, vm, last):
        par = slot & 1
        pend_dma = []
        for b in range(NBLK):
            rds = []
            if b + 4 < NBLK: rds = rd_B(slot, b + 4)
            if b == BAR and not last:
                A(f"s_waitcnt vmcnt({vm}) lgkmcnt(0)"); q.all_done()
                A("s_barrier")
                ns = (slot + 1) & 3
                rds = rd_A(ns, par ^ 1)[:1] + rd_B(ns, 0) + rd_A(ns, par ^ 1)[1:] + rd_B(ns, 1)
                rds = rd_A(ns, par ^ 1) + rd_B(ns, 0) + rd_B(ns, 1)
                if do_dma: pend_dma = dma(slot)
            elif b > BAR and not last:
                rds = rd_B((slot + 1) & 3, b - BAR + 1)
            for i in range(4):
                if b == 0: q.wait(('A', par, i), ('B', b))
                else: q.wait(('B', b))
                a = acc(b, i); fa = AFR + par * 16 + i * 4; fb = bfr(b)
                A(f"v_mfma_f32_16x16x32_bf16 v[{a}:{a+3}], v[{fa}:{fa+3}], v[{fb}:{fb+3}], v[{a}:{a+3}]")
                k = (len(rds) + (3 - i)) // (4 - i)
                for _ in range(k):
                    t, x = rds.pop(0); q.issue(t, x)
                if b > BAR and pend_dma and (i & 1):
                    for x in pend_dma.pop(0): A(x)
            if b == NBLK - 1:
                while pend_dma:
                    for x in pend_dma.pop(0): A(x)
    return prologue_dma, first_reads, stage, q, ND

def g1():
    kstart('k2_g1_kernel')
    A("s_cmp_ge_u32 s2, 256\ns_cbranch_scc1 L2_end")
    A("s_load_dwordx2 s[6:7], s[0:1], 120\ns_load_dwordx4 s[32:35], s[0:1], 80\ns_load_dwordx4 s[36:39], s[0:1], 24")
    A("s_load_dwordx4 s[44:47], s[0:1], 8\ns_load_dwordx2 s[48:49], s[0:1], 56")
    A("v_and_b32 v1, 63, v0\nv_lshrrev_b32 v10, 6, v0\nv_readfirstlane_b32 s25, v10")
    A("s_and_b32 s26, s25, 3")
    A("s_and_b32 s27, s2, 7\ns_lshl_b32 s27, s27, 2\ns_bfe_u32 s3, s2, 0x20003\ns_add_u32 s27, s27, s3")
    A("s_lshr_b32 s28, s2, 5")
    A("s_mov_b32 s30, -1\ns_mov_b32 s31, 0xffff")
    A("s_lshl_b32 s3, s26, 12\nv_lshlrev_b32 v4, 4, v1\nv_add_u32 v4, s3, v4")
    A(f"v_add_u32 v5, {2*SLOT1}, v4")
    A("v_lshrrev_b32 v10, 4, v1\nv_bfe_u32 v11, v1, 2, 2\nv_and_b32 v12, 3, v1")
    A("v_and_b32 v13, 1, v10\nv_lshl_or_b32 v13, v13, 2, v11\nv_lshrrev_b32 v14, 1, v10\nv_lshl_or_b32 v13, v14, 4, v13")
    A(f"v_mul_u32_u24 v13, 224, v13\nv_lshl_add_u32 v13, v12, 3, v13\nv_add_u32 v6, {OFF_WG}, v13\nv_add_u32 v7, {2*SLOT1}, v6")
    A("v_and_b32 v13, 15, v1\nv_lshrrev_b32 v14, 2, v13\nv_sub_u32 v14, 0, v14\nv_and_b32 v14, 3, v14\nv_xor_b32 v14, v14, v10")
    A(f"v_lshlrev_b32 v13, 6, v13\nv_lshl_add_u32 v13, v14, 4, v13\nv_add_u32 v8, {OFF_B}, v13\nv_add_u32 v9, {2*SLOT1}, v8")
    A("s_waitcnt lgkmcnt(0)")
    srd(8, 6, WS_SIZE)
    stamp(0, 1, 16, 25, 0)
    A("s_cmp_ge_u32 s25, 4\ns_cbranch_scc1 L2_kind1")
    srd(12, 32, 1024 * 7168); srd(16, 34, 1024 * 7168)
    A("s_mov_b32 s3, 4682")
    for v, add in ((2, 0), (3, 64)):
        A(f"v_add_u32 v10, {add}, v1\nv_mul_lo_u32 v11, v10, s3\nv_lshrrev_b32 v11, 16, v11")
        A("v_mul_u32_u24 v12, 14, v11\nv_sub_u32 v12, v10, v12")
        A("v_and_b32 v13, 3, v11\nv_lshrrev_b32 v11, 2, v11\nv_lshl_or_b32 v13, v11, 3, v13")
        A("s_and_b32 s4, s26, 1\ns_lshl_b32 s4, s4, 2\ns_lshr_b32 s5, s26, 1\ns_lshl_b32 s5, s5, 4\ns_or_b32 s4, s4, s5")
        A("v_or_b32 v13, s4, v13\nv_mul_u32_u24 v13, 7168, v13\nv_lshl_add_u32 v13, v12, 4, v13")
        A(f"s_mul_i32 s4, s27, 224\nv_add_u32 v{v}, s4, v13")
    A("v_subrev_u32 v3, 1024, v3")
    A("s_mov_b32 s20, 0\ns_mul_i32 s22, s26, 1792")
    g1_body(0)
    A("s_branch L2_end")
    A("L2_kind1:")
    A("s_cmp_ge_u32 s26, 2\ns_cselect_b32 s4, s38, s36\ns_cselect_b32 s5, s39, s37")
    srd(12, 4, 2 * MB)
    srd(16, 44, 2048); srd(52, 46, 2048); srd(56, 48, 2048)
    A("v_and_b32 v10, 15, v1\ns_lshl_b32 s3, s27, 5\nv_add_u32 v10, s3, v10\nv_lshlrev_b32 v10, 1, v10")
    for b in range(2):
        A(f"buffer_load_ushort v{80+3*b}, v10, s[16:19], 0 offen offset:{32*b}")
        A(f"buffer_load_ushort v{81+3*b}, v10, s[52:55], 0 offen offset:{32*b}")
        A(f"buffer_load_ushort v{82+3*b}, v10, s[56:59], 0 offen offset:{32*b}")
    A("v_mov_b32 v2, v4")
    A("v_lshrrev_b32 v10, 2, v1\nv_lshrrev_b32 v11, 4, v1\nv_sub_u32 v11, 0, v11\nv_xor_b32 v11, v11, v1\nv_and_b32 v11, 3, v11")
    A("s_and_b32 s4, s26, 1\ns_lshl_b32 s4, s4, 4\ns_add_u32 s4, s4, s3\nv_add_u32 v10, s4, v10\nv_lshlrev_b32 v10, 11, v10\nv_lshl_add_u32 v3, v11, 4, v10")
    A(f"s_lshl_b32 s20, s28, 19\ns_add_u32 s20, s20, {WS_XN}\ns_mov_b32 s21, 0\ns_lshl_b32 s22, s26, 12\ns_lshl_b32 s23, s26, 10")
    g1_body(1)
    A("L2_end:\ns_endpgm")

PB = 224
def pr(b, k): return PB + 14 * b + k

def ssm_params():
    for b in range(2):
        lr, li, ld = 80 + 3*b, 81 + 3*b, 82 + 3*b
        A(f"v_lshlrev_b32 v{lr}, 16, v{lr}\nv_lshlrev_b32 v{li}, 16, v{li}\nv_lshlrev_b32 v{ld}, 16, v{ld}")
        A(f"v_mul_f32 v{ld}, {fh(LOG2E)}, v{ld}\nv_exp_f32 v{ld}, v{ld}\nv_cvt_pk_bf16_f32 v{ld}, v{ld}, v{ld}\nv_and_b32 v{ld}, 0xffff0000, v{ld}")
        A(f"v_mul_f32 v10, v{ld}, v{lr}\nv_mul_f32 v10, {fh(LOG2E)}, v10\nv_exp_f32 v10, v10")
        A(f"v_mul_f32 v11, v{ld}, v{li}\nv_mul_f32 v11, {fh(1/(2*math.pi))}, v11\nv_rndne_f32 v12, v11\nv_sub_f32 v11, v11, v12")
        A(f"v_cos_f32 v12, v11\nv_sin_f32 v13, v11")
        A(f"v_mul_f32 v{pr(b,0)}, v10, v12\nv_mul_f32 v{pr(b,1)}, v10, v13")
        A(f"v_add_f32 v10, -1.0, v{pr(b,0)}")
        A(f"v_mul_f32 v11, v{lr}, v{lr}\nv_fmac_f32 v11, v{li}, v{li}\nv_rcp_f32 v11, v11\nv_add_f32 v11, v11, v11")
        A(f"v_mul_f32 v12, v10, v{lr}\nv_fmac_f32 v12, v{pr(b,1)}, v{li}\nv_mul_f32 v{pr(b,10)}, v12, v11")
        A(f"v_mul_f32 v12, v{pr(b,1)}, v{lr}\nv_fma_f32 v12, -v10, v{li}, v12\nv_mul_f32 v{pr(b,11)}, v12, v11")
        cur = (pr(b,0), pr(b,1))
        dsts = {16: (pr(b,2), pr(b,3)), 32: (pr(b,4), pr(b,5)), 64: (pr(b,6), pr(b,7)), 256: (pr(b,8), pr(b,9))}
        e = 1; tog = 0
        while e < 256:
            e *= 2
            d = dsts.get(e, (10 + 2*tog, 11 + 2*tog)); tog ^= 1
            A(f"v_mul_f32 v14, v{cur[1]}, v{cur[1]}\nv_mul_f32 v15, v{cur[0]}, v{cur[1]}")
            A(f"v_fma_f32 v{d[0]}, v{cur[0]}, v{cur[0]}, -v14\nv_add_f32 v{d[1]}, v15, v15")
            cur = d
        A("v_and_b32 v14, 32, v1\nv_cmp_ne_u32 vcc, 0, v14")
        A(f"v_mov_b32 v14, 1.0\nv_cndmask_b32 v10, v14, v{pr(b,4)}, vcc\nv_mov_b32 v14, 0\nv_cndmask_b32 v11, v14, v{pr(b,5)}, vcc")
        A(f"v_mul_f32 v12, v10, v{pr(b,2)}\nv_fma_f32 v12, -v11, v{pr(b,3)}, v12\nv_mul_f32 v13, v10, v{pr(b,3)}\nv_fmac_f32 v13, v11, v{pr(b,2)}")
        A("v_and_b32 v14, 16, v1\nv_cmp_ne_u32 vcc, 0, v14")
        A(f"v_cndmask_b32 v{pr(b,12)}, v10, v12, vcc\nv_cndmask_b32 v{pr(b,13)}, v11, v13, vcc")

def g1_body(kind):
    prologue_dma, first_reads, stage, q, ND = g1_loop(kind)
    prologue_dma()
    nacc = 160 if kind == 0 else 128
    for r in range(nacc): A(f"v_mov_b32 v{ACC+r}, 0")
    if kind == 1:
        A(f"s_waitcnt vmcnt({4*ND})")
        ssm_params()
    A(f"s_waitcnt vmcnt({3*ND})\ns_barrier")
    stamp(1, 1, 16, 25, 0)
    first_reads()
    A("s_mov_b32 s24, 7")
    A(f".p2align 4\nL2_loop{kind}:")
    q.forget()
    for s in range(4): stage(s, True, 2*ND, False)
    A(f"s_sub_u32 s24, s24, 1\ns_cmp_lg_u32 s24, 0\ns_cbranch_scc1 L2_loop{kind}")
    q.forget()
    stage(0, False, 2*ND, False); stage(1, False, ND, False); stage(2, False, 0, False); stage(3, False, 0, True)
    stamp(2 + kind, 1, 16, 26, 0)
    A("v_and_b32 v12, 3, v1\nv_bfe_u32 v13, v1, 3, 1\nv_lshl_or_b32 v12, v13, 2, v12\nv_bfe_u32 v13, v1, 2, 1\nv_lshl_or_b32 v12, v13, 3, v12")
    A("v_and_b32 v13, 48, v1\nv_or_b32 v12, v12, v13\nv_lshlrev_b32 v10, 4, v12\nv_xor_b32 v11, 128, v10\nv_add_u32 v11, 1024, v11")
    A(f"s_lshl_b32 s41, s28, 1\ns_lshr_b32 s3, s26, 1\ns_add_u32 s41, s41, s3\ns_mul_i32 s41, s41, {352*4096}\ns_and_b32 s3, s26, 1\ns_lshl_b32 s3, s3, 11\ns_add_u32 s41, s41, s3\ns_add_u32 s41, s41, {WS_ACT}")
    c0 = -2 * 0.7978845608028654 * LOG2E
    T = 16
    A(f"s_mov_b32 s40, {fh(c0*0.044715)}\nv_mov_b32 v{T+20}, {fh(c0)}")
    A(f"s_mul_i32 s42, s27, {7*4096}\ns_add_u32 s42, s42, s41\ns_add_u32 s42, s42, {128*4096}")
    if kind == 0:
        for j in range(5):
            gelu_pair(2*j, 2*j+1, T, 42)
            if j == 0: A("s_barrier")
            if j < 4: A("s_add_u32 s42, s42, 4096")
        stamp(4, 1, 16, 26, 0)
        return
    E = 48
    def seq(b, part):
        blk = 4 + 2*b + part
        return [acc(blk, i) + r for i in range(4) for r in range(4)]
    for b in range(2):
        A(f"v_mov_b32 v{E+2*b}, v{seq(b,0)[0]}\nv_mov_b32 v{E+2*b+1}, v{seq(b,1)[0]}")
    for t in range(1, 16):
        for b in range(2):
            A(f"v_fma_f32 v{52+2*b}, v{pr(b,0)}, v{E+2*b}, v{seq(b,0)[t]}\nv_fma_f32 v{53+2*b}, v{pr(b,0)}, v{E+2*b+1}, v{seq(b,1)[t]}")
        for b in range(2):
            A(f"v_fma_f32 v{56+b}, -v{pr(b,1)}, v{E+2*b+1}, v{52+2*b}\nv_fma_f32 v{E+2*b+1}, v{pr(b,1)}, v{E+2*b}, v{53+2*b}")
        for b in range(2):
            A(f"v_mov_b32 v{E+2*b}, v{56+b}")
    for k in range(4): A(f"v_mov_b32 v{52+k}, v{48+k}")
    for k in range(4): A(f"v_permlane16_swap_b32 v{48+k}, v{52+k}")
    for b in range(2): cmul_add(56+2*b, 57+2*b, pr(b,2), pr(b,3), 48+2*b, 49+2*b, 52+2*b, 53+2*b, 72, 73)
    for k in range(4): A(f"v_mov_b32 v{60+k}, v{56+k}")
    for k in range(4): A(f"v_permlane32_swap_b32 v{56+k}, v{60+k}")
    for b in range(2): cmul_add(64+2*b, 65+2*b, pr(b,4), pr(b,5), 56+2*b, 57+2*b, 60+2*b, 61+2*b, 72, 73)
    A(f"v_and_b32 v12, 15, v1\nv_lshlrev_b32 v12, 4, v12\nv_add_u32 v13, {G1_SCR}, v12\ns_lshl_b32 s3, s26, 8\nv_add_u32 v14, s3, v13")
    A("s_mov_b64 exec, 0xffff\nds_write_b128 v14, v[64:67]\ns_mov_b64 exec, -1")
    A("v_and_b32 v15, 32, v1\nv_cmp_ne_u32 vcc, 0, v15\nv_mov_b32 v15, 0")
    for k in range(4): A(f"v_cndmask_b32 v{68+k}, v15, v{56+k}, vcc")
    for b in range(2): cmul_add(60+2*b, 61+2*b, pr(b,2), pr(b,3), 68+2*b, 69+2*b, 48+2*b, 49+2*b, 72, 73)
    A("v_and_b32 v15, 16, v1\nv_cmp_ne_u32 vcc, 0, v15")
    for k in range(4): A(f"v_cndmask_b32 v{68+k}, v{68+k}, v{60+k}, vcc")
    A("s_waitcnt lgkmcnt(0)\ns_barrier")
    for w in range(4): A(f"ds_read_b128 v[{48+4*w}:{51+4*w}], v13 offset:{256*w}")
    A(f"s_lshl_b32 s43, s27, 11\ns_add_u32 s43, s43, {WS_TBUF}")
    A("s_waitcnt lgkmcnt(0)")
    A("s_cmp_lg_u32 s26, 0\ns_cbranch_scc1 L2_nopub")
    for k in range(4): A(f"v_mov_b32 v{64+k}, v{48+k}")
    for w in range(1, 4):
        for b in range(2): cmul_add(64+2*b, 65+2*b, pr(b,6), pr(b,7), 64+2*b, 65+2*b, 48+4*w+2*b, 49+4*w+2*b, 72+2*b, 73+2*b)
    for k in range(4): A(f"v_min_u32 v{64+k}, -2, v{64+k}")
    A("s_lshl_b32 s3, s28, 8\ns_add_u32 s3, s3, s43\ns_mov_b64 exec, 0xffff")
    A("buffer_store_dwordx4 v[64:67], v12, s[8:11], s3 offen sc1\ns_mov_b64 exec, -1")
    A("L2_nopub:")
    for b in range(2):
        cr, ci = pr(b,10), pr(b,11)
        for t in range(0, 16, 2):
            for u in range(2):
                re, im = seq(b,0)[t+u], seq(b,1)[t+u]
                A(f"v_mul_f32 v{72+2*u}, v{cr}, v{re}\nv_mul_f32 v{73+2*u}, v{ci}, v{re}")
            for u in range(2):
                re, im = seq(b,0)[t+u], seq(b,1)[t+u]
                A(f"v_fma_f32 v{re}, -v{ci}, v{im}, v{72+2*u}\nv_fma_f32 v{im}, -v{cr}, v{im}, -v{73+2*u}")
    A("s_add_u32 s42, s42, 20480")
    gelu_pair(0, 1, T, 42)
    A("s_add_u32 s42, s42, 4096")
    gelu_pair(2, 3, T, 42)
    for k in range(4): A(f"v_mov_b32 v{64+k}, 0")
    A("s_cmp_eq_u32 s28, 0\ns_cbranch_scc1 L2_nocarry")
    A("s_sub_u32 s4, s28, 1\ns_mov_b32 s5, 0")
    TB = 16
    A("L2_poll:")
    for j in range(7):
        A(f"s_min_u32 s3, s4, {j}\ns_lshl_b32 s3, s3, 8\ns_add_u32 s3, s3, s43")
        A(f"buffer_load_dwordx4 v[{TB+4*j}:{TB+4*j+3}], v12, s[8:11], s3 offen sc1")
    A("s_waitcnt vmcnt(0)")
    A(f"v_max_u32 v72, v{TB}, v{TB+1}")
    for k in range(2, 28, 2): A(f"v_max3_u32 v72, v72, v{TB+k}, v{TB+k+1}")
    A("v_cmp_eq_u32 vcc, -1, v72\ns_cbranch_vccz L2_got\ns_sleep 2\ns_add_u32 s5, s5, 1\ns_cmp_lt_u32 s5, 0x10000\ns_cbranch_scc1 L2_poll")
    A("L2_got:")
    for k in range(4): A(f"v_mov_b32 v{64+k}, v{TB+k}")
    for j in range(1, 7):
        A(f"s_cmp_le_u32 s28, {j}\ns_cbranch_scc1 L2_nocarry")
        for b in range(2): cmul_add(64+2*b, 65+2*b, pr(b,8), pr(b,9), 64+2*b, 65+2*b, TB+4*j+2*b, TB+4*j+2*b+1, 72+2*b, 73+2*b)
    A("L2_nocarry:")
    for w in range(3):
        A(f"s_cmp_le_u32 s26, {w}\ns_cbranch_scc1 L2_hw")
        for b in range(2): cmul_add(64+2*b, 65+2*b, pr(b,6), pr(b,7), 64+2*b, 65+2*b, 48+4*w+2*b, 49+4*w+2*b, 72+2*b, 73+2*b)
    A("L2_hw:")
    for b in range(2): cmul_add(64+2*b, 65+2*b, pr(b,12), pr(b,13), 64+2*b, 65+2*b, 68+2*b, 69+2*b, 72+2*b, 73+2*b)
    for b in range(2):
        cr, ci = pr(b,10), pr(b,11); re, im = 64+2*b, 65+2*b
        A(f"v_mul_f32 v72, v{cr}, v{re}\nv_mul_f32 v73, v{ci}, v{re}\nv_fma_f32 v{68+2*b}, -v{ci}, v{im}, v72\nv_fma_f32 v{69+2*b}, -v{cr}, v{im}, -v73")
    for t in range(16):
        for b in range(2):
            pre, pim = (68+2*b, 69+2*b) if t == 0 else (seq(b,0)[t-1], seq(b,1)[t-1])
            re, im = seq(b,0)[t], seq(b,1)[t]
            A(f"v_fmac_f32 v{re}, v{pr(b,0)}, v{pre}\nv_fmac_f32 v{im}, v{pr(b,0)}, v{pim}")
        for b in range(2):
            pre, pim = (68+2*b, 69+2*b) if t == 0 else (seq(b,0)[t-1], seq(b,1)[t-1])
            re, im = seq(b,0)[t], seq(b,1)[t]
            A(f"v_fmac_f32 v{re}, v{pr(b,1)}, v{pim}\nv_fma_f32 v{im}, -v{pr(b,1)}, v{pre}, v{im}")
    A("s_lshl_b32 s42, s27, 13\ns_add_u32 s42, s42, s41")
    n = 0
    for b in range(2):
        for part in range(2):
            sq = seq(b, part)
            A(f"s_add_u32 s3, s42, {(part*64 + b)*4096}")
            for h in range(2):
                o = 16 + 4 * n; n += 1
                for k in range(4): A(f"v_cvt_pk_bf16_f32 v{o+k}, v{sq[8*h+2*k]}, v{sq[8*h+2*k+1]}")
                A(f"buffer_store_dwordx4 v[{o}:{o+3}], v{10+h}, s[8:11], s3 offen")
    stamp(5, 1, 72, 26, 0)

def g2():
    NA = 32 + XO; NBS = 56 - XO
    FR = [32, 64]; ACCO = 96; ACCY = 160; XR = 224
    kstart('k3_g2_kernel')
    A("s_cmp_ge_u32 s2, 256\ns_cbranch_scc1 L3_end")
    A("s_load_dwordx2 s[6:7], s[0:1], 120\ns_load_dwordx4 s[36:39], s[0:1], 40\ns_load_dwordx4 s[40:43], s[0:1], 96")
    A("s_load_dwordx2 s[44:45], s[0:1], 0\ns_load_dwordx2 s[46:47], s[0:1], 64")
    A("v_and_b32 v2, 63, v0\nv_lshrrev_b32 v1, 6, v0\nv_readfirstlane_b32 s26, v1")
    A("s_and_b32 s27, s2, 1\ns_bfe_u32 s28, s2, 0x20001\ns_lshr_b32 s29, s2, 3")
    A("s_and_b32 s30, s28, 1\ns_lshl_b32 s30, s30, 3\ns_and_b32 s31, s29, 7\ns_add_u32 s30, s30, s31")
    A("s_lshr_b32 s31, s28, 1\ns_lshl_b32 s31, s31, 2\ns_lshr_b32 s32, s29, 3\ns_add_u32 s31, s31, s32")
    A("s_waitcnt lgkmcnt(0)")
    srd(8, 6, WS_SIZE)
    stamp(0, 2, 16, 26, 0)
    A("s_cmp_ge_u32 s26, 4\ns_cbranch_scc1 L3_loader")
    A("s_and_b32 s48, s26, 1\ns_lshr_b32 s49, s26, 1")
    A("v_lshrrev_b32 v6, 4, v2\nv_bfe_u32 v7, v2, 2, 2\nv_and_b32 v8, 3, v2")
    A("v_lshrrev_b32 v9, 1, v6\nv_lshlrev_b32 v9, 12, v9\ns_lshl_b32 s3, s48, 11\nv_add_u32 v9, s3, v9")
    A("v_lshrrev_b32 v3, 1, v8\nv_lshl_add_u32 v9, v3, 10, v9")
    A("v_and_b32 v4, 1, v6\nv_lshl_or_b32 v4, v4, 2, v7")
    A("v_lshl_or_b32 v5, v3, 3, v4\nv_lshl_add_u32 v9, v5, 4, v9")
    A("v_and_b32 v5, 1, v8\nv_lshl_add_u32 v10, v5, 3, v9\nv_xor_b32 v11, 128, v10")
    A("v_lshl_add_u32 v9, v6, 3, v7\nv_lshlrev_b32 v9, 8, v9\nv_lshl_add_u32 v9, v8, 3, v9\nv_add_u32 v9, 16384, v9")
    for n in range(4):
        A(f"s_lshl_b32 s3, s49, 2\ns_add_u32 s3, s3, {n}\nv_xor_b32 v5, s3, v4\nv_lshl_add_u32 v{12+n}, v5, 5, v9")
    A("v_and_b32 v5, 15, v2\nv_and_b32 v9, 7, v2\nv_xor_b32 v9, v9, v6\nv_lshlrev_b32 v9, 4, v9\nv_lshl_add_u32 v9, v5, 7, v9")
    A("s_lshl_b32 s3, s49, 13\ns_add_u32 s3, s3, 16384\nv_add_u32 v16, s3, v9\nv_xor_b32 v17, 64, v16")
    for r in range(8): A(f"v_add_u32 v{18+r}, 0x10000, v{10+r}")
    for r in range(64): A(f"v_mov_b32 v{ACCO+r}, 0")
    A(f"s_lshl_b32 s50, s30, 3\ns_add_u32 s50, s50, s31\ns_lshl_b32 s51, s50, 16\ns_lshl_b32 s3, s26, 14\ns_add_u32 s51, s51, s3\ns_add_u32 s51, s51, {WS_OBUF}")
    A(f"s_lshl_b32 s52, s50, 6\ns_lshl_b32 s3, s26, 4\ns_add_u32 s52, s52, s3\ns_add_u32 s52, s52, {WS_FLAGS}")
    q = LQ()
    def reads(typ, slot, hh, buf):
        ab = 10 + 8 * (slot >> 1); so = (slot & 1) * 32768; f = FR[buf]
        def ra(i):
            off = so + hh * 8192 + 256 * i
            return [((buf, 'a', i, 0), f"ds_read_b64_tr_b16 v[{f+4*i}:{f+4*i+1}], v{ab} offset:{off}"),
                    ((buf, 'a', i), f"ds_read_b64_tr_b16 v[{f+4*i+2}:{f+4*i+3}], v{ab+1} offset:{off}")]
        def rb(n):
            g = f + 16 + 4 * n
            if typ == 'o':
                off = so + hh * 8192
                return [((buf, 'b', n, 0), f"ds_read_b64_tr_b16 v[{g}:{g+1}], v{ab+2+n} offset:{off}"),
                        ((buf, 'b', n), f"ds_read_b64_tr_b16 v[{g+2}:{g+3}], v{ab+2+n} offset:{off+1024}")]
            return [((buf, 'b', n), f"ds_read_b128 v[{g}:{g+3}], v{ab+6+hh} offset:{so + 2048*n}")]
        return ra(0) + rb(0) + ra(1) + ra(2) + ra(3) + rb(1) + rb(2) + rb(3)
    def half(typ, buf, rds, bar):
        accb = ACCO if typ == 'o' else ACCY
        f = FR[buf]; start = 0
        for n in range(4):
            for i in range(4):
                k = n * 4 + i
                if bar and k == 4:
                    A("s_waitcnt lgkmcnt(0)"); q.all_done(); A("s_barrier"); start = 4
                q.wait((buf, 'a', i), (buf, 'b', n))
                a = accb + k * 4
                A(f"v_mfma_f32_16x16x32_bf16 v[{a}:{a+3}], v[{f+16+4*n}:{f+16+4*n+3}], v[{f+4*i}:{f+4*i+3}], v[{a}:{a+3}]")
                if bar and k < 4: continue
                left = 15 - k
                cnt = (len(rds) + left - 1) // left if left > 0 else len(rds)
                for _ in range(min(cnt, len(rds))):
                    t, x = rds.pop(0); q.issue(t, x)
        assert not rds
    A("v_and_b32 v5, 15, v2\ns_lshl_b32 s3, s30, 7\ns_lshl_b32 s4, s48, 6\ns_add_u32 s3, s3, s4\nv_add_u32 v5, s3, v5")
    A("s_lshl_b32 s3, s31, 7\ns_lshl_b32 s4, s49, 6\ns_add_u32 s3, s3, s4\nv_lshl_add_u32 v9, v6, 2, s3")
    A("v_lshlrev_b32 v26, 11, v5\nv_lshl_add_u32 v26, v9, 1, v26")
    A("v_lshlrev_b32 v27, 1, v26")
    A("s_cmp_lg_u32 s27, 0\ns_cbranch_scc1 L3_typeB")
    srd(12, 44, 4 * MB); srd(16, 46, 2048)
    A(f"v_lshlrev_b32 v5, 3, v5\nv_lshlrev_b32 v9, 1, v9\ns_mov_b32 s3, {WS_STATS}")
    for i in range(4): A(f"buffer_load_dwordx2 v[{32+2*i}:{33+2*i}], v5, s[8:11], s3 offen offset:{128*i}")
    for n in range(4): A(f"buffer_load_dwordx2 v[{40+2*n}:{41+2*n}], v9, s[16:19], 0 offen offset:{32*n}")
    for i in range(4):
        A(f"s_mov_b32 s3, {32768*i}")
        for n in range(4):
            r = XR + (n * 4 + i) * 2
            A(f"buffer_load_dwordx2 v[{r}:{r+1}], v26, s[12:15], s3 offen offset:{32*n}")
    A("s_waitcnt vmcnt(0)")
    for n in range(4):
        for hw in range(2):
            A(f"v_lshlrev_b32 v{48+4*n+2*hw}, 16, v{40+2*n+hw}\nv_and_b32 v{49+4*n+2*hw}, 0xffff0000, v{40+2*n+hw}")
    for n in range(4):
        for i in range(4):
            r = XR + (n * 4 + i) * 2; a = ACCY + (n * 4 + i) * 4; m, ri = 32 + 2*i, 33 + 2*i
            for hw in range(2):
                A(f"v_lshlrev_b32 v{a+2*hw}, 16, v{r+hw}\nv_and_b32 v{a+2*hw+1}, 0xffff0000, v{r+hw}")
            for k in range(4): A(f"v_sub_f32 v{a+k}, v{a+k}, v{m}")
            for hw in range(2): A(f"v_cvt_pk_bf16_f32 v{64+hw}, v{a+2*hw}, v{a+2*hw+1}")
            for hw in range(2): A(f"v_lshlrev_b32 v{a+2*hw}, 16, v{64+hw}\nv_and_b32 v{a+2*hw+1}, 0xffff0000, v{64+hw}")
            for k in range(4): A(f"v_mul_f32 v{a+k}, v{a+k}, v{ri}")
            for hw in range(2): A(f"v_cvt_pk_bf16_f32 v{64+hw}, v{a+2*hw}, v{a+2*hw+1}")
            for hw in range(2): A(f"v_lshlrev_b32 v{a+2*hw}, 16, v{64+hw}\nv_and_b32 v{a+2*hw+1}, 0xffff0000, v{64+hw}")
            for k in range(4): A(f"v_mul_f32 v{a+k}, v{a+k}, v{48+4*n+k}")
    A("s_barrier")
    stamp(1, 2, 64, 26, 0)
    for t, x in reads('y', 0, 0, 0): q.issue(t, x)
    A("s_mov_b32 s24, 7")
    A(".p2align 4\nL3_yloop:")
    q.forget()
    for s in range(4):
        half('y', 0, reads('y', s, 1, 1), False)
        half('y', 1, reads('y', (s+1) & 3, 0, 0), True)
    A("s_sub_u32 s24, s24, 1\ns_cmp_lg_u32 s24, 0\ns_cbranch_scc1 L3_yloop")
    q.forget()
    for s in range(4):
        half('y', 0, reads('y', s, 1, 1), False)
        half('y', 1, reads('y' if s < 3 else 'o', (s+1) & 3, 0, 0), True)
    A(f"s_mov_b32 s24, {XO}\ns_branch L3_oloop")
    A("L3_typeB:")
    A("s_barrier")
    stamp(1, 2, 64, 26, 0)
    for t, x in reads('o', 0, 0, 0): q.issue(t, x)
    A(f"s_mov_b32 s24, {NBS}")
    A(".p2align 4\nL3_oloop:")
    q.forget()
    for s in range(4):
        half('o', 0, reads('o', s, 1, 1), False)
        A("s_sub_u32 s24, s24, 1\ns_cmp_eq_u32 s24, 0\ns_cbranch_scc1 L3_otail")
        half('o', 1, reads('o', (s+1) & 3, 0, 0), True)
    A("s_branch L3_oloop")
    A("L3_otail:")
    A("s_waitcnt lgkmcnt(0)"); q.all_done()
    half('o', 1, [], False)
    stamp(2, 2, 28, 26, 0)
    A("v_lshlrev_b32 v5, 4, v2\nv_mov_b32 v9, 0")
    A("s_cmp_eq_u32 s27, 0\ns_cbranch_scc1 L3_finish")
    for k in range(16):
        if k % 4 == 0 and k: A("s_add_u32 s51, s51, 4096")
        A(f"buffer_store_dwordx4 v[{ACCO+4*k}:{ACCO+4*k+3}], v5, s[8:11], s51 offen offset:{1024*(k%4)} sc1")
    A("v_mov_b32 v3, 1\ns_waitcnt vmcnt(0)\ns_mov_b64 exec, 1")
    A("buffer_store_dword v3, v9, s[8:11], s52 offen sc1\ns_mov_b64 exec, -1")
    stamp(3, 2, 28, 26, 0)
    A("s_branch L3_end")
    A("L3_finish:")
    srd(16, 42, 8 * MB)
    A("s_mov_b32 s5, 0\nL3_poll:")
    A("buffer_load_dword v3, v9, s[8:11], s52 offen sc1\ns_waitcnt vmcnt(0)\nv_readfirstlane_b32 s3, v3\ns_cmp_eq_u32 s3, 1\ns_cbranch_scc1 L3_got\ns_sleep 2\ns_add_u32 s5, s5, 1\ns_cmp_lt_u32 s5, 0x10000\ns_cbranch_scc1 L3_poll")
    A("L3_got:")
    for k in range(16):
        if k % 4 == 0 and k: A("s_add_u32 s51, s51, 4096")
        A(f"buffer_load_dwordx4 v[{32+4*k}:{35+4*k}], v5, s[8:11], s51 offen offset:{1024*(k%4)} sc1")
    A(f"s_mov_b32 s4, {fh(-LOG2E)}")
    for n in range(4):
        for i in range(4):
            k = n * 4 + i
            o = ACCO + 4*k; y = ACCY + 4*k; p = 32 + 4*k; r = XR + 2*k
            A(f"s_waitcnt vmcnt(15)")
            for e in range(4): A(f"v_add_f32 v{o+e}, v{o+e}, v{p+e}")
            for e in range(4): A(f"v_mul_f32 v{p+e}, s4, v{o+e}")
            for e in range(4): A(f"v_exp_f32 v{p+e}, v{p+e}")
            for e in range(4): A(f"v_mul_f32 v{o+e}, v{o+e}, v{y+e}")
            for e in range(4): A(f"v_add_f32 v{p+e}, 1.0, v{p+e}")
            for e in range(4): A(f"v_rcp_f32 v{p+e}, v{p+e}")
            for hw in range(2): A(f"v_lshlrev_b32 v{y+2*hw}, 16, v{r+hw}\nv_and_b32 v{y+2*hw+1}, 0xffff0000, v{r+hw}")
            for e in range(4): A(f"v_fmac_f32 v{y+e}, v{o+e}, v{p+e}")
            A(f"s_mov_b32 s3, {65536*i}")
            A(f"buffer_store_dwordx4 v[{y}:{y+3}], v27, s[16:19], s3 offen offset:{64*n}")
    stamp(3, 2, 28, 26, 0)
    A("s_branch L3_end")
    A("L3_loader:")
    A("s_sub_u32 s26, s26, 4")
    A("s_lshl_b32 s48, s26, 12\nv_lshlrev_b32 v3, 4, v2\nv_add_u32 v3, s48, v3")
    A("v_lshrrev_b32 v5, 4, v2")
    for j in range(4):
        A(f"v_or_b32 v6, {((j>>1)&1)<<2}, v5\nv_bfe_u32 v7, v2, 1, 3\nv_xor_b32 v7, v7, v6\nv_lshlrev_b32 v7, 5, v7")
        A("v_and_b32 v8, 1, v2\nv_lshl_add_u32 v7, v8, 4, v7")
        A(f"s_lshl_b32 s3, s26, 4\ns_add_u32 s3, s3, {4*j}\nv_add_u32 v9, s3, v5\nv_lshl_add_u32 v{14+j}, v9, 11, v7")
        if j: A(f"v_subrev_u32 v{14+j}, {1024*j}, v{14+j}")
    A("v_lshrrev_b32 v5, 3, v2\nv_and_b32 v6, 7, v2\nv_xor_b32 v6, v6, v5\nv_lshlrev_b32 v6, 4, v6")
    for j in range(4):
        A(f"s_lshl_b32 s3, s26, 5\ns_add_u32 s3, s3, {8*j}\nv_add_u32 v9, s3, v5\nv_lshl_add_u32 v{10+j}, v9, 11, v6")
        if j: A(f"v_subrev_u32 v{10+j}, {1024*j}, v{10+j}")
    A(f"s_mul_i32 s33, s30, {352*4096}\ns_add_u32 s33, s33, {WS_ACT}")
    A("s_mov_b32 s15, 0x20000\ns_mov_b32 s53, 0")
    A("s_cmp_lg_u32 s27, 0\ns_cbranch_scc1 L3_lB")
    A(f"s_mov_b32 s12, s36\ns_and_b32 s13, s37, 0xffff\ns_mov_b32 s14, {2*MB}\ns_lshl_b32 s34, s31, 18\ns_mov_b32 s35, 128")
    A(f"s_mov_b32 s54, 0\ns_mov_b32 s24, {NA-4}\ns_branch L3_lgo")
    A("L3_lB:")
    A(f"s_mov_b32 s12, s40\ns_and_b32 s13, s41, 0xffff\ns_mov_b32 s14, {3584*2048}\ns_lshl_b32 s34, s31, 8\ns_add_u32 s34, s34, {XO*131072}\ns_mov_b32 s35, 131072")
    for j in range(4): A(f"v_mov_b32 v{10+j}, v{14+j}")
    A(f"s_add_u32 s33, s33, {NA*16384}\ns_mov_b32 s54, 1000\ns_mov_b32 s24, {NBS-4}")
    A("L3_lgo:")
    def issue():
        A("s_add_u32 m0, s48, s53")
        for j in range(4): A(f"buffer_load_dwordx4 v3, s[8:11], s33 offen offset:{1024*j} lds")
        A("s_add_u32 m0, m0, 16384\ns_add_u32 s33, s33, 16384")
        for j in range(4): A(f"buffer_load_dwordx4 v{10+j}, s[12:15], s34 offen offset:{1024*j} lds")
        A("s_add_u32 s34, s34, s35\ns_add_u32 s53, s53, 32768\ns_and_b32 s53, s53, 0x1ffff\ns_add_u32 s54, s54, 1")
    for s in range(4): issue()
    A("s_waitcnt vmcnt(24)\ns_barrier")
    A(".p2align 4\nL3_lloop:")
    A("s_cmp_eq_u32 s54, 16\ns_cbranch_scc0 L3_ln1")
    A("s_mov_b32 s12, s38\ns_and_b32 s13, s39, 0xffff\ns_lshl_b32 s34, s31, 18")
    A("L3_ln1:")
    A("s_cmp_eq_u32 s54, 32\ns_cbranch_scc0 L3_ln2")
    A(f"s_mov_b32 s12, s40\ns_and_b32 s13, s41, 0xffff\ns_mov_b32 s14, {3584*2048}\ns_lshl_b32 s34, s31, 8\ns_mov_b32 s35, 131072")
    for j in range(4): A(f"v_mov_b32 v{10+j}, v{14+j}")
    A("L3_ln2:")
    A("s_waitcnt vmcnt(16)\ns_barrier")
    issue()
    A("s_sub_u32 s24, s24, 1\ns_cmp_lg_u32 s24, 0\ns_cbranch_scc1 L3_lloop")
    A("s_waitcnt vmcnt(16)\ns_barrier\ns_waitcnt vmcnt(8)\ns_barrier\ns_waitcnt vmcnt(0)\ns_barrier")
    A("L3_end:\ns_endpgm")

header()
k1()
if P['only'] != 1: g1()
if P['only'] == 0: g2()
A.raw('.section .rodata,"a"')
kdesc('k1_ln_kernel', 80, 96)
if P['only'] != 1: kdesc('k2_g1_kernel', 256, 96)
if P['only'] == 0: kdesc('k3_g2_kernel', 256, 96)
sys.stdout.write(A.text())
```

```python
import sys, math, struct
from asmlib import Asm

P = dict(stamp=0, X=13, only=0, pf1=0, pf2=1, pfc=0, pfs=7, st1=1, pf3=1, st0=1, ord=1, g2p=1, tail=1, st3=0, rot=0, dbg=0, fw=1, ls=1, xat=5, al=0, pz=6, fuse=1, pfa=1, pfb=2, slp=2, nodma=0, nobar=0, prio=0, nord=0, bar0=3, bar1=3, dpos=0, mix=0, npk=2, snake=1, g2x=0, barpos=4)
for a in sys.argv[1:]:
    k, v = a.split('='); P[k] = int(v)
STAMP = P['stamp']; XO = P['X']; STF = ['', ' sc1', ' nt', ' sc0 sc1'][P['st1']]; OSTF = ['', ' sc1', ' nt', ' sc0 sc1'][P['st3']]

def f2u(x): return struct.unpack('<I', struct.pack('<f', x))[0]
def fh(x): return '0x%08x' % f2u(x)

MB = 1 << 20
WS_XN = 0
WS_STATS = 4 * MB
WS_TBUF = 4 * MB + 65536
WS_FLAGS = 4 * MB + 196608
WS_ACT = 8 * MB
WS_OBUF = 32 * MB
WS_STAMP = 48 * MB
WS_SIZE = 64 * MB
LOG2E = 1.4426950408889634

A = Asm()

def header():
    A.raw("; S5 SSM + GEGLU block: LN -> G1 (Bu GEMM + scan, gate/up GEMM + GEGLU) -> G2 (C GEMM, down GEMM, combine)")
    if not P['fuse']: A.raw("; @launch kernel=k1_ln_kernel grid=(256,1,1) block=(256,1,1) lds=1024")
    if P['only'] != 1:
        A.raw("; @launch kernel=k2_g1_kernel grid=(256,1,1) block=(512,1,1) lds=140800")
    if P['only'] == 0:
        A.raw("; @launch kernel=k3_g2_kernel grid=(256,1,1) block=(512,1,1) lds=163840")
    A.raw('.amdgcn_target "amdgcn-amd-amdhsa--gfx950"')
    A.raw('.text')

def kstart(name):
    A.raw(f'.globl {name}\n.p2align 8\n.type {name},@function\n{name}:')
    A.reset()

def kdesc(name, vgpr, sgpr):
    A.raw(f'''.p2align 6
.amdhsa_kernel {name}
  .amdhsa_next_free_vgpr {vgpr}
  .amdhsa_next_free_sgpr {sgpr}
  .amdhsa_accum_offset {(vgpr+3)//4*4}
  .amdhsa_group_segment_fixed_size 0
  .amdhsa_kernarg_size 128
  .amdhsa_user_sgpr_count 2
  .amdhsa_user_sgpr_kernarg_segment_ptr 1
  .amdhsa_system_sgpr_workgroup_id_x 1
.end_amdhsa_kernel''')

def srd(d, b, size):
    A(f"s_mov_b32 s{d}, s{b}\ns_and_b32 s{d+1}, s{b+1}, 0xffff\ns_mov_b32 s{d+2}, {size}\ns_mov_b32 s{d+3}, 0x20000")

def stamp(slot, kid, tmpv, cond_wave_sgpr=None, wave=0, sp=92, dyn=None):
    if not STAMP: return
    lab = f"Lst_{kid}_{slot}_{len(A.lines)}"
    if cond_wave_sgpr is not None:
        A(f"s_cmp_lg_u32 s{cond_wave_sgpr}, {wave}\ns_cbranch_scc1 {lab}")
    A(f"s_memrealtime s[{sp}:{sp+1}]\ns_memtime s[{sp+2}:{sp+3}]\ns_waitcnt lgkmcnt(0)")
    A(f"s_lshl_b32 s{sp+4}, s2, 7\ns_add_u32 s{sp+4}, s{sp+4}, {WS_STAMP + kid*256*128 + slot*16}")
    if dyn is not None: A(f"s_lshl_b32 s{sp+5}, s{dyn}, 4\ns_sub_u32 s{sp+4}, s{sp+4}, s{sp+5}")
    A(f"v_mov_b32 v{tmpv}, s{sp}\nv_mov_b32 v{tmpv+1}, s{sp+1}\nv_mov_b32 v{tmpv+2}, s{sp+2}\nv_mov_b32 v{tmpv+3}, s{sp+3}")
    A(f"s_mov_b64 exec, 1\nbuffer_store_dwordx4 v[{tmpv}:{tmpv+3}], off, s[8:11], s{sp+4}\ns_mov_b64 exec, -1")
    A(f"{lab}:")

def k1():
    kstart('k1_ln_kernel')
    A("s_cmp_ge_u32 s2, 256\ns_cbranch_scc1 L1_end")
    A("s_load_dwordx2 s[4:5], s[0:1], 0\ns_load_dwordx2 s[6:7], s[0:1], 120")
    A("s_load_dwordx4 s[32:35], s[0:1], 80\ns_load_dwordx4 s[36:39], s[0:1], 24")
    A("v_and_b32 v1, 63, v0\nv_lshrrev_b32 v2, 6, v0")
    A("s_and_b32 s20, s2, 1\ns_bfe_u32 s21, s2, 0x20001\ns_bfe_u32 s22, s2, 0x20003\ns_lshr_b32 s23, s2, 5")
    A("v_lshrrev_b32 v3, 3, v1\ns_lshl_b32 s24, s20, 3\nv_add_u32 v3, s24, v3")
    A("v_and_b32 v4, 7, v1")
    A("s_lshl_b32 s24, s23, 8\ns_lshl_b32 s25, s22, 6\ns_add_u32 s24, s24, s25\ns_lshl_b32 s25, s21, 2\ns_add_u32 s24, s24, s25")
    A("v_lshrrev_b32 v5, 2, v3\nv_lshlrev_b32 v5, 4, v5\nv_and_b32 v6, 3, v3\nv_add3_u32 v5, v5, v6, s24")
    A("v_lshlrev_b32 v6, 11, v5\nv_lshlrev_b32 v7, 9, v2\nv_lshlrev_b32 v8, 4, v4\nv_add3_u32 v6, v6, v7, v8")
    A("s_lshl_b32 s25, s23, 14\ns_lshl_b32 s26, s22, 12\ns_add_u32 s25, s25, s26\ns_lshl_b32 s26, s21, 10\ns_add_u32 s25, s25, s26")
    A("v_lshlrev_b32 v7, 20, v2\nv_lshrrev_b32 v8, 2, v4\nv_lshlrev_b32 v8, 17, v8\nv_add3_u32 v7, v7, v8, s25")
    A("v_and_b32 v8, 3, v4\nv_lshlrev_b32 v8, 8, v8\nv_lshlrev_b32 v9, 4, v3\nv_add3_u32 v7, v7, v8, v9")
    A("s_waitcnt lgkmcnt(0)")
    srd(12, 4, 4 * MB); srd(8, 6, WS_SIZE)
    for j in range(4):
        A(f"buffer_load_dwordx4 v[{16+4*j}:{19+4*j}], v6, s[12:15], 0 offen offset:{128*j}")
    stamp(0, 0, 72)
    NPF = 0
    if P['pf1']:
        A("v_readfirstlane_b32 s30, v2")
        A("s_bitcmp1_b32 s30, 0\ns_cselect_b32 s4, s34, s32\ns_cselect_b32 s5, s35, s33")
        srd(40, 4, 1024 * 7168)
        A("s_bitcmp1_b32 s30, 0\ns_cselect_b32 s4, s38, s36\ns_cselect_b32 s5, s39, s37")
        srd(48, 4, 2 * MB)
        A("v_min_u32 v13, 27, v1\nv_mul_u32_u24 v14, 9363, v13\nv_lshrrev_b32 v14, 16, v14\nv_mul_u32_u24 v15, 7, v14\nv_sub_u32 v15, v13, v15")
        A("v_mul_u32_u24 v14, 7168, v14\nv_lshl_add_u32 v14, v15, 7, v14")
        A("s_and_b32 s4, s2, 7\ns_lshr_b32 s5, s2, 3\ns_mul_i32 s52, s4, 896\ns_mul_i32 s53, s5, 28672\ns_add_u32 s52, s52, s53")
        A("s_lshr_b32 s53, s30, 1\ns_mul_i32 s53, s53, 917504\ns_add_u32 s52, s52, s53")
        A("buffer_load_dword v80, v14, s[40:43], s52 offen")
        NPF += 1
        if P['pf1'] >= 2:
            A("s_lshl_b32 s4, s4, 18\ns_lshl_b32 s5, s5, 13\ns_add_u32 s52, s4, s5\ns_lshr_b32 s53, s30, 1\ns_lshl_b32 s53, s53, 12\ns_add_u32 s52, s52, s53")
            A("v_and_b32 v13, 31, v1\nv_lshlrev_b32 v13, 7, v13")
            A("buffer_load_dword v81, v13, s[48:51], s52 offen")
            NPF += 1
    if P['pfc'] and P['only'] == 0:
        A("s_getpc_b64 s[54:55]\nL1_pc:")
        A("s_add_u32 s54, s54, k2_g1_kernel-L1_pc\ns_addc_u32 s55, s55, 0")
        A("s_lshr_b32 s31, s2, 3\ns_lshl_b32 s31, s31, 5\nv_and_b32 v13, 31, v0\nv_add_u32 v13, s31, v13\nv_lshlrev_b32 v13, 6, v13")
        A("s_mov_b32 s31, L3_end-k2_g1_kernel\nv_min_u32 v13, s31, v13")
        A("global_load_dword v87, v13, s[54:55]")
        NPF += 1
    A(f"s_waitcnt vmcnt({NPF})")
    for d in range(16):
        A(f"v_lshlrev_b32 v{32+2*d}, 16, v{16+d}\nv_and_b32 v{33+2*d}, 0xffff0000, v{16+d}")
    def tree(dst, fn):
        pass
    A("v_add_f32 v64, v32, v33\nv_add_f32 v65, v34, v35\nv_add_f32 v66, v36, v37\nv_add_f32 v67, v38, v39")
    for e in range(8, 32, 4):
        for r in range(4): A(f"v_add_f32 v{64+r}, v{64+r}, v{32+e+r}")
    A("v_add_f32 v64, v64, v65\nv_add_f32 v66, v66, v67\nv_add_f32 v64, v64, v66")
    def red8(v):
        A(f"v_add_f32_dpp v{v}, v{v}, v{v} quad_perm:[1,0,3,2] row_mask:0xf bank_mask:0xf")
        A(f"v_add_f32_dpp v{v}, v{v}, v{v} quad_perm:[2,3,0,1] row_mask:0xf bank_mask:0xf")
        A(f"v_add_f32_dpp v{v}, v{v}, v{v} row_half_mirror row_mask:0xf bank_mask:0xf")
    red8(64)
    A(f"v_mul_f32 v68, {fh(1/256)}, v64")
    for r in range(4):
        A(f"v_sub_f32 v69, v{32+r}, v68\nv_mul_f32 v{72+r}, v69, v69")
    for e in range(4, 32):
        A(f"v_sub_f32 v{76+(e&3)}, v{32+e}, v68\nv_fmac_f32 v{72+(e&3)}, v{76+(e&3)}, v{76+(e&3)}")
    A("v_add_f32 v72, v72, v73\nv_add_f32 v74, v74, v75\nv_add_f32 v69, v72, v74")
    red8(69)
    A("v_lshrrev_b32 v70, 3, v1\nv_lshlrev_b32 v70, 5, v70\nv_lshl_add_u32 v71, v2, 3, v70")
    A("ds_write_b64 v71, v[68:69]\ns_waitcnt lgkmcnt(0)\ns_barrier")
    A("ds_read_b128 v[72:75], v70\nds_read_b128 v[76:79], v70 offset:16\ns_waitcnt lgkmcnt(0)")
    A("v_add_f32 v64, v72, v74\nv_add_f32 v65, v76, v78\nv_add_f32 v64, v64, v65\nv_mul_f32 v64, 0.25, v64".replace("0.25", fh(0.25)))
    A("v_add_f32 v65, v73, v75\nv_add_f32 v66, v77, v79\nv_add_f32 v65, v65, v66")
    A("v_sub_f32 v72, v72, v64\nv_sub_f32 v74, v74, v64\nv_sub_f32 v76, v76, v64\nv_sub_f32 v78, v78, v64")
    A("v_mul_f32 v66, v72, v72\nv_fmac_f32 v66, v74, v74\nv_fmac_f32 v66, v76, v76\nv_fmac_f32 v66, v78, v78")
    A(f"v_mul_f32 v65, {fh(1/1024)}, v65\nv_fmac_f32 v65, {fh(0.25)}, v66")
    A("v_cvt_pk_bf16_f32 v66, v64, v65\nv_lshlrev_b32 v64, 16, v66\nv_and_b32 v65, 0xffff0000, v66")
    A(f"v_add_f32 v65, {fh(1e-5)}, v65\nv_cvt_pk_bf16_f32 v65, v65, v65\nv_and_b32 v65, 0xffff0000, v65")
    A("v_sqrt_f32 v65, v65\nv_cvt_pk_bf16_f32 v65, v65, v65\nv_and_b32 v65, 0xffff0000, v65\nv_rcp_f32 v65, v65")
    for d in range(16):
        a, b = 32 + 2*d, 33 + 2*d
        A(f"v_sub_f32 v{a}, v{a}, v64\nv_sub_f32 v{b}, v{b}, v64\nv_cvt_pk_bf16_f32 v{16+d}, v{a}, v{b}")
    for d in range(16):
        a, b = 32 + 2*d, 33 + 2*d
        A(f"v_lshlrev_b32 v{a}, 16, v{16+d}\nv_and_b32 v{b}, 0xffff0000, v{16+d}")
        A(f"v_mul_f32 v{a}, v{a}, v65\nv_mul_f32 v{b}, v{b}, v65\nv_cvt_pk_bf16_f32 v{16+d}, v{a}, v{b}")
    for j in range(4):
        A(f"s_mov_b32 s26, {WS_XN + 262144*j}")
        A(f"buffer_store_dwordx4 v[{16+4*j}:{19+4*j}], v7, s[8:11], s26 offen{' sc1' if P['st0'] else ''}")
    A(f"v_lshlrev_b32 v5, 3, v5\ns_mov_b32 s26, {WS_STATS}")
    A("v_and_b32 v8, 0xc7, v0\nv_cmp_eq_u32 vcc, 0, v8\ns_and_saveexec_b64 s[28:29], vcc\ns_cbranch_execz L1_b")
    A("buffer_store_dwordx2 v[64:65], v5, s[8:11], s26 offen")
    A("L1_b:\ns_mov_b64 exec, s[28:29]")
    A(f"s_lshl_b32 s26, s2, 8\ns_add_u32 s26, s26, {WS_TBUF}\ns_lshl_b32 s27, s2, 5\ns_add_u32 s27, s27, {WS_FLAGS}")
    A("v_lshlrev_b32 v10, 2, v0\nv_mov_b32 v11, -1\nv_mov_b32 v12, 0")
    A("v_cmp_gt_u32 vcc, 64, v0\ns_and_saveexec_b64 s[28:29], vcc\ns_cbranch_execz L1_a")
    A("buffer_store_dword v11, v10, s[8:11], s26 offen")
    A("v_cmp_gt_u32 vcc, 8, v0\ns_and_b64 exec, exec, vcc")
    A("buffer_store_dword v12, v10, s[8:11], s27 offen")
    A("L1_a:\ns_mov_b64 exec, s[28:29]")
    stamp(1, 0, 72)
    A("L1_end:\ns_endpgm")

class LQ:
    def __init__(self): self.n = 0; self.tag = {}; self.done = 0
    def issue(self, tag, text):
        if P['nord']: text = "s_nop 0"
        A(text); self.n += 1; self.tag[tag] = self.n
    def wait(self, *tags):
        need = max(self.tag[t] for t in tags)
        if need <= self.done: return
        c = self.n - need
        assert c <= 15
        A(f"s_waitcnt lgkmcnt({c})"); self.done = need
    def all_done(self): self.done = self.n
    def forget(self): self.done = 0

SLOT1 = 34816
OFF_WG, OFF_WU, OFF_B = 16384, 23552, 30720
G1_SCR = 4 * SLOT1
ACC = 96; AFR = 16; BFR = 48
def acc(b, i): return ACC + (b * 4 + i) * 4

NPK = [0]
def pk(op, d, *srcs, sel=None, neg=None):
    n = len(srcs); sel = sel or 'n' * n; neg = neg or [0] * n
    t = [f"v[{x}:{x+1}]" if isinstance(x, int) else x for x in srcs]
    for x in srcs:
        if isinstance(x, int): assert x % 2 == 0, x
    assert d % 2 == 0
    lo = [{'n': 0, 'l': 0, 'h': 1, 'x': 1}[c] for c in sel]; hi = [{'n': 1, 'l': 0, 'h': 1, 'x': 0}[c] for c in sel]
    nl = [1 if c in (1, 'l') else 0 for c in neg]; nh = [1 if c in (1, 'h') else 0 for c in neg]
    if NPK[0]:
        out = []
        halves = [(0, lo, nl), (1, hi, nh)]
        srcs_hi = [x + hi[k] for k, x in enumerate(srcs) if isinstance(x, int)]
        srcs_lo = [x + lo[k] for k, x in enumerate(srcs) if isinstance(x, int)]
        if d in srcs_hi:
            assert d + 1 not in srcs_lo, "alias"
            halves = halves[::-1]
        for hf, sl, ng in halves:
            ops = [(('-' if ng[k] else '') + f"v{x+sl[k]}") if isinstance(x, int) else x for k, x in enumerate(srcs)]
            dd = f"v{d+hf}"
            if op == 'fma' and ops[2] == dd and not any(ng): out.append(f"v_fmac_f32 {dd}, {ops[0]}, {ops[1]}")
            elif op == 'fma': out.append(f"v_fma_f32 {dd}, " + ', '.join(ops))
            elif op == 'add' and ng[1] and not ng[0]: out.append(f"v_sub_f32 {dd}, {ops[0]}, {ops[1][1:]}")
            else:
                if not ops[1].startswith('v'): ops = ops[::-1]
                assert not any(ng)
                out.append(f"v_{op}_f32 {dd}, " + ', '.join(ops))
        return '\n'.join(out)
    f = lambda v: '[' + ','.join(map(str, v)) + ']'
    m = ''
    if any(lo): m += f" op_sel:{f(lo)}"
    if not all(hi): m += f" op_sel_hi:{f(hi)}"
    if any(nl): m += f" neg_lo:{f(nl)}"
    if any(nh): m += f" neg_hi:{f(nh)}"
    return f"v_pk_{op}_f32 v[{d}:{d+1}], " + ', '.join(t) + m

def gelu_pair(bg, bu, T, soff):
    K = T + 20
    A(f"s_lshr_b32 s{soff}, s40, 2\ns_lshl_b32 s{soff}, s{soff}, 18\ns_and_b32 s3, s40, 3\ns_lshl_b32 s3, s3, 12\ns_add_u32 s{soff}, s{soff}, s3\ns_add_u32 s{soff}, s{soff}, s41\ns_add_u32 s40, s40, 1")
    for h in range(2):
        prs = [(acc(bg, 2*h + ii) + 2*k, acc(bu, 2*h + ii) + 2*k) for ii in range(2) for k in range(2)]
        for n, (g, u) in enumerate(prs): A(pk('mul', T+2*n, g, g))
        for n, (g, u) in enumerate(prs): A(pk('fma', T+2*n, T+2*n, K, K, sel='nlh'))
        for n, (g, u) in enumerate(prs): A(pk('mul', T+2*n, T+2*n, g))
        for n, (g, u) in enumerate(prs):
            A(f"v_exp_f32 v{T+2*n}, v{T+2*n}\nv_exp_f32 v{T+2*n+1}, v{T+2*n+1}")
            A(pk('mul', T+8+2*n, g, u))
        for n in range(4): A(pk('add', T+2*n, T+2*n, '1.0', sel='nl'))
        for e in range(8): A(f"v_rcp_f32 v{T+e}, v{T+e}")
        for n in range(4): A(pk('mul', T+8+2*n, T+8+2*n, T+2*n))
        o = acc(bg, 2 * h)
        for n in range(4): A(f"v_cvt_pk_bf16_f32 v{o+n}, v{T+8+2*n}, v{T+9+2*n}")
        A(f"buffer_store_dwordx4 v[{o}:{o+3}], v{10+h}, s[8:11], s{soff} offen{STF}")

def cma(d, a, b, c, t):
    return [pk('fma', t, a, b, c, sel='lnn'), pk('fma', d, a, b, t, sel='hxn', neg=['l', 0, 0])]
def cma2(args):
    l = [cma(*x) for x in args]
    for k in range(2):
        for x in l: A(x[k])

def g1_loop(kind):
    NBLK = 10 if kind == 0 else 8
    NBUF = 5 if kind == 0 else 8
    BAR = NBLK - 3
    ND = 4 if kind == 0 else 5
    q = LQ()
    def bfr(b): return BFR + (b % NBUF) * 4
    def rd_A(slot, par):
        out = []
        for i in range(4):
            f = AFR + par * 16 + i * 4
            out.append((('A', par, i), f"ds_read_b128 v[{f}:{f+3}], v{4+(slot>>1)} offset:{(slot&1)*SLOT1 + i*1024}"))
        return out
    def rd_B(slot, b):
        f = bfr(b); so = (slot & 1) * SLOT1
        if kind == 0 or b < 4:
            j = (b >> 1) + (0 if kind == 0 else 5)
            off = so + (b & 1) * 7168 + 32 * j
            return [(('B', b, 0), f"ds_read_b64_tr_b16 v[{f}:{f+1}], v{6+(slot>>1)} offset:{off}"),
                    (('B', b), f"ds_read_b64_tr_b16 v[{f+2}:{f+3}], v{6+(slot>>1)} offset:{off+1792}")]
        else:
            idx = ((b - 4) & 1) * 2 + ((b - 4) >> 1)
            return [(('B', b), f"ds_read_b128 v[{f}:{f+3}], v{8+(slot>>1)} offset:{so + idx*1024}")]
    def dma(slot, part='ab'):
        base = slot * SLOT1
        sc = ' sc1' if P['fuse'] else ''
        if kind == 0:
            return [[f"s_add_u32 m0, s22, {base + OFF_WG}", "buffer_load_dwordx4 v2, s[12:15], s20 offen lds"],
                    ["s_mov_b64 exec, s[30:31]", "buffer_load_dwordx4 v3, s[12:15], s20 offen offset:1024 lds", "s_mov_b64 exec, -1"],
                    [f"s_add_u32 m0, s22, {base + OFF_WU}", "buffer_load_dwordx4 v2, s[16:19], s20 offen lds"],
                    ["s_mov_b64 exec, s[30:31]", "buffer_load_dwordx4 v3, s[16:19], s20 offen offset:1024 lds", "s_mov_b64 exec, -1", "s_add_u32 s20, s20, 229376"]]
        else:
            la = [[f"s_add_u32 m0, s22, {base}", f"buffer_load_dwordx4 v2, s[8:11], s20 offen{sc} lds"],
                  [f"buffer_load_dwordx4 v2, s[8:11], s20 offen offset:1024{sc} lds"],
                  [f"buffer_load_dwordx4 v2, s[8:11], s20 offen offset:2048{sc} lds"],
                  [f"buffer_load_dwordx4 v2, s[8:11], s20 offen offset:3072{sc} lds", "s_add_u32 s20, s20, 131072"]]
            lb = [[f"s_add_u32 m0, s23, {base + OFF_B}", "buffer_load_dwordx4 v3, s[12:15], s21 offen lds", "s_add_u32 s21, s21, 64"]]
            return (la if 'a' in part else []) + (lb if 'b' in part else [])
    def prologue_dma():
        for s in range(2):
            if s and P['ord']: A("s_barrier")
            for grp in dma(s):
                for x in grp: A(x)
    def first_reads():
        for t, x in rd_A(0, 0) + rd_B(0, 0) + rd_B(0, 1) + rd_B(0, 2) + rd_B(0, 3): q.issue(t, x)
    def stage(slot, do_dma, vm, last, bar=True, fill=None, nfill=0, post_bar=None, early=None, dslot=None, czero=False, epart='ab', dpart='ab'):
        par = slot & 1
        pend_dma = dma(early, epart) if early is not None else []
        if dslot is None: dslot = slot
        for b in range(NBLK):
            rds = []
            if b + 4 < NBLK: rds = rd_B(slot, b + 4)
            if b == BAR and not last:
                if bar:
                    A(f"s_waitcnt vmcnt({vm}) lgkmcnt(0)"); q.all_done()
                    if not P['nobar']: A("s_barrier")
                    if post_bar: A(post_bar)
                ns = (slot + 1) & 3
                rds = rd_A(ns, par ^ 1)[:1] + rd_B(ns, 0) + rd_A(ns, par ^ 1)[1:] + rd_B(ns, 1)
                rds = rd_A(ns, par ^ 1) + rd_B(ns, 0) + rd_B(ns, 1)
                assert not pend_dma
                if do_dma and not P['nodma']: pend_dma = dma(dslot, dpart)
            elif b > BAR and not last:
                rds = rd_B((slot + 1) & 3, b - BAR + 1)
            for i in range(4):
                if b == 0: q.wait(('A', par, i), ('B', b))
                else: q.wait(('B', b))
                ii = 3 - i if (P['snake'] and b & 1) else i
                a = acc(b, ii); fa = AFR + par * 16 + ii * 4; fb = bfr(b)
                A(f"v_mfma_f32_16x16x32_bf16 v[{a}:{a+3}], v[{fa}:{fa+3}], v[{fb}:{fb+3}], " + ("0" if czero else f"v[{a}:{a+3}]"))
                k = (len(rds) + (3 - i)) // (4 - i)
                for _ in range(k):
                    t, x = rds.pop(0); q.issue(t, x)
                for _ in range(nfill):
                    if fill: A(fill.pop(0))
                if pend_dma and ((b > BAR and (i & 1)) or (b < BAR and i == 3)):
                    for x in pend_dma.pop(0): A(x)
            if b == NBLK - 1:
                while pend_dma:
                    for x in pend_dma.pop(0): A(x)
    return prologue_dma, first_reads, stage, q, ND, dma

def g1():
    kstart('k2_g1_kernel')
    A("s_cmp_ge_u32 s2, 256\ns_cbranch_scc1 L2_end")
    A("s_load_dwordx2 s[6:7], s[0:1], 120\ns_load_dwordx4 s[32:35], s[0:1], 80\ns_load_dwordx4 s[36:39], s[0:1], 24")
    A("s_load_dwordx4 s[44:47], s[0:1], 8\ns_load_dwordx2 s[48:49], s[0:1], 56")
    A("s_load_dwordx4 s[60:63], s[0:1], 40\ns_load_dwordx2 s[64:65], s[0:1], 96")
    A("s_load_dwordx2 s[50:51], s[0:1], 0\ns_load_dwordx2 s[66:67], s[0:1], 112")
    A("v_and_b32 v1, 63, v0\nv_lshrrev_b32 v10, 6, v0\nv_readfirstlane_b32 s25, v10")
    A("s_and_b32 s27, s2, 7\ns_lshl_b32 s27, s27, 2\ns_bfe_u32 s3, s2, 0x20003\ns_add_u32 s27, s27, s3")
    A("s_lshr_b32 s28, s2, 5")
    A("s_mov_b32 s30, -1\ns_mov_b32 s31, 0xffff")
    A("s_and_b32 s26, s25, 3")
    A("s_lshl_b32 s3, s26, 12\nv_lshlrev_b32 v4, 4, v1\nv_add_u32 v4, s3, v4")
    if P['fuse']:
        A("v_lshrrev_b32 v103, 3, v1\ns_and_b32 s3, s2, 1\ns_lshl_b32 s3, s3, 3\nv_add_u32 v103, s3, v103\nv_and_b32 v104, 7, v1")
        A("s_bfe_u32 s4, s2, 0x20001\ns_bfe_u32 s5, s2, 0x20003\ns_lshl_b32 s3, s28, 8\ns_lshl_b32 s29, s5, 6\ns_add_u32 s3, s3, s29\ns_lshl_b32 s29, s4, 2\ns_add_u32 s3, s3, s29")
        A("v_lshrrev_b32 v100, 2, v103\nv_lshlrev_b32 v100, 4, v100\nv_and_b32 v101, 3, v103\nv_add3_u32 v100, v100, v101, s3")
        A("s_lshl_b32 s3, s25, 8\nv_lshlrev_b32 v101, 11, v100\nv_lshl_add_u32 v101, v104, 4, v101\nv_add_u32 v101, s3, v101")
        A(f"s_lshl_b32 s3, s28, 14\ns_lshl_b32 s5, s5, 12\ns_add_u32 s3, s3, s5\ns_lshl_b32 s4, s4, 10\ns_add_u32 s3, s3, s4\ns_lshl_b32 s4, s25, 19\ns_add_u32 s3, s3, s4")
        A("v_lshrrev_b32 v102, 2, v104\nv_lshlrev_b32 v102, 17, v102\nv_and_b32 v105, 3, v104\nv_lshl_add_u32 v102, v105, 8, v102\nv_lshl_add_u32 v102, v103, 4, v102\nv_add_u32 v102, s3, v102")
    A("s_cmp_ge_u32 s25, 4\ns_cbranch_scc1 L2_kind1")
    A("s_mov_b32 s3, 4682")
    A("s_and_b32 s4, s26, 1\ns_lshl_b32 s4, s4, 2\ns_lshr_b32 s5, s26, 1\ns_lshl_b32 s5, s5, 4\ns_or_b32 s4, s4, s5\ns_mul_i32 s5, s27, 224")
    for v, add in ((2, 0), (3, 64)):
        A(f"v_add_u32 v10, {add}, v1\nv_mul_u32_u24 v11, s3, v10\nv_lshrrev_b32 v11, 16, v11")
        A("v_mul_u32_u24 v12, 14, v11\nv_sub_u32 v12, v10, v12")
        A("v_and_b32 v13, 3, v11\nv_lshrrev_b32 v11, 2, v11\nv_lshl_or_b32 v13, v11, 3, v13")
        A("v_or_b32 v13, s4, v13\nv_mul_u32_u24 v13, 7168, v13\nv_lshl_add_u32 v13, v12, 4, v13")
        A(f"v_add_u32 v{v}, s5, v13")
    A("v_subrev_u32 v3, 1024, v3")
    A("s_mov_b32 s20, 0\ns_mul_i32 s22, s26, 1792")
    A("s_waitcnt lgkmcnt(0)")
    srd(12, 32, 1024 * 7168); srd(16, 34, 1024 * 7168)
    g1_body(0)
    A("s_branch L2_end")
    A("L2_kind1:")
    A("v_mov_b32 v2, v4\ns_lshl_b32 s3, s27, 5")
    A("v_lshrrev_b32 v10, 2, v1\nv_lshrrev_b32 v11, 4, v1\nv_sub_u32 v11, 0, v11\nv_xor_b32 v11, v11, v1\nv_and_b32 v11, 3, v11")
    A("s_and_b32 s4, s26, 1\ns_lshl_b32 s4, s4, 4\ns_add_u32 s4, s4, s3\nv_add_u32 v10, s4, v10\nv_lshlrev_b32 v10, 11, v10\nv_lshl_add_u32 v3, v11, 4, v10")
    A(f"s_lshl_b32 s20, s28, 14\ns_add_u32 s20, s20, {WS_XN}\ns_mov_b32 s21, 0\ns_lshl_b32 s22, s26, 12\ns_lshl_b32 s23, s26, 10")
    A("s_waitcnt lgkmcnt(0)")
    A("s_cmp_ge_u32 s26, 2\ns_cselect_b32 s4, s38, s36\ns_cselect_b32 s5, s39, s37")
    srd(12, 4, 2 * MB)
    g1_body(1)
    A("L2_end:\ns_endpgm")

PB = 224
def pr(b, k): return PB + 16 * b + k

def ssm_params():
    L = []
    def E(t): L.extend(t.split('\n'))
    for b in range(2):
        lr, li, ld = 80 + 3*b, 81 + 3*b, 82 + 3*b
        LR, LI = pr(b,0), pr(b,2)
        E(f"v_lshlrev_b32 v{lr}, 16, v{lr}\nv_lshlrev_b32 v{li}, 16, v{li}\nv_lshlrev_b32 v{ld}, 16, v{ld}")
        E(f"v_mul_f32 v{ld}, {fh(LOG2E)}, v{ld}\nv_exp_f32 v{ld}, v{ld}\nv_mul_f32 v14, v{lr}, v{lr}\nv_cvt_pk_bf16_f32 v{ld}, v{ld}, v{ld}\nv_and_b32 v{ld}, 0xffff0000, v{ld}")
        E(f"v_mul_f32 v10, v{ld}, v{lr}\nv_mul_f32 v10, {fh(LOG2E)}, v10\nv_exp_f32 v10, v10")
        E(f"v_mul_f32 v11, v{ld}, v{li}\nv_mul_f32 v11, {fh(1/(2*math.pi))}, v11\nv_rndne_f32 v12, v11\nv_sub_f32 v11, v11, v12")
        E(f"v_cos_f32 v12, v11\nv_sin_f32 v13, v11\nv_fmac_f32 v14, v{li}, v{li}\nv_rcp_f32 v11, v14")
        E(f"v_mul_f32 v{LR}, v10, v12\nv_mul_f32 v{LI}, v10, v13")
        E(f"v_add_f32 v10, -1.0, v{LR}\nv_add_f32 v11, v11, v11")
        E(f"v_mul_f32 v12, v10, v{lr}\nv_fmac_f32 v12, v{LI}, v{li}\nv_mul_f32 v{pr(b,12)}, v12, v11")
        E(f"v_mul_f32 v12, v{LI}, v{lr}\nv_fma_f32 v12, -v10, v{li}, v12\nv_mul_f32 v{pr(b,13)}, v12, v11")
        cur = (LR, LI)
        dsts = {2: (LR+1, LI+1), 16: (pr(b,4), pr(b,5)), 32: (pr(b,6), pr(b,7)), 64: (pr(b,8), pr(b,9)), 256: (pr(b,10), pr(b,11))}
        e = 1; tog = 0
        while e < 256:
            e *= 2
            d = dsts.get(e, (10 + 2*tog, 11 + 2*tog)); tog ^= 1
            E(f"v_mul_f32 v14, v{cur[1]}, v{cur[1]}\nv_mul_f32 v15, v{cur[0]}, v{cur[1]}")
            E(f"v_fma_f32 v{d[0]}, v{cur[0]}, v{cur[0]}, -v14\nv_add_f32 v{d[1]}, v15, v15")
            cur = d
        E("v_and_b32 v14, 32, v1\nv_cmp_ne_u32 vcc, 0, v14\nv_mov_b32 v14, 1.0\nv_mov_b32 v15, 0")
        E(f"v_cndmask_b32 v10, v14, v{pr(b,6)}, vcc\nv_cndmask_b32 v11, v15, v{pr(b,7)}, vcc")
        E("v_and_b32 v14, 16, v1\nv_cmp_ne_u32 vcc, 0, v14")
        E(f"v_mul_f32 v12, v10, v{pr(b,4)}\nv_fma_f32 v12, -v11, v{pr(b,5)}, v12\nv_mul_f32 v13, v10, v{pr(b,5)}\nv_fmac_f32 v13, v11, v{pr(b,4)}")
        E(f"v_cndmask_b32 v{pr(b,14)}, v10, v12, vcc\nv_cndmask_b32 v{pr(b,15)}, v11, v13, vcc")
    return L

def ln_phase(kind, young):
    X = 116; R = 132
    A(f"s_waitcnt vmcnt({young})")
    if P['dbg'] == 5: stamp(0, 3, 16, 25, 4)
    for d in range(8): A(f"v_lshlrev_b32 v{X+2*d}, 16, v{108+d}\nv_and_b32 v{X+1+2*d}, 0xffff0000, v{108+d}")
    A(pk('add', R, X, X+2)); A(pk('add', R+2, X+4, X+6))
    A(pk('add', R, R, X+8)); A(pk('add', R+2, R+2, X+10)); A(pk('add', R, R, X+12)); A(pk('add', R+2, R+2, X+14))
    A(pk('add', R, R, R+2)); A(f"v_add_f32 v{R}, v{R}, v{R+1}")
    def red8(v):
        A(f"v_add_f32_dpp v{v}, v{v}, v{v} quad_perm:[1,0,3,2] row_mask:0xf bank_mask:0xf")
        A(f"v_add_f32_dpp v{v}, v{v}, v{v} quad_perm:[2,3,0,1] row_mask:0xf bank_mask:0xf")
        A(f"v_add_f32_dpp v{v}, v{v}, v{v} row_half_mirror row_mask:0xf bank_mask:0xf")
    red8(R)
    A(f"v_mul_f32 v{R+4}, {fh(1/128)}, v{R}")
    for d in range(8): A(pk('add', R+8+2*d, X+2*d, R+4, sel='nl', neg=[0, 1]))
    A(pk('mul', R, R+8, R+8)); A(pk('mul', R+2, R+10, R+10))
    for d in range(2, 8): A(pk('fma', R+2*(d&1), R+8+2*d, R+8+2*d, R+2*(d&1)))
    A(pk('add', R, R, R+2)); A(f"v_add_f32 v{R+5}, v{R}, v{R+1}")
    red8(R+5)
    A(f"v_lshrrev_b32 v106, 3, v1\nv_lshlrev_b32 v106, 6, v106\nv_add_u32 v106, {G1_SCR+1024}, v106\ns_lshl_b32 s3, s25, 3\nv_add_u32 v107, s3, v106")
    A(f"ds_write_b64 v107, v[{R+4}:{R+5}]\ns_waitcnt lgkmcnt(0)\ns_barrier")
    for k in range(4): A(f"ds_read_b128 v[{R+8+4*k}:{R+11+4*k}], v106 offset:{16*k}")
    A("s_waitcnt lgkmcnt(0)")
    Q = R + 8
    A(pk('add', R, Q, Q+2)); A(pk('add', R+2, Q+4, Q+6)); A(pk('add', R, R, Q+8)); A(pk('add', R+2, R+2, Q+10)); A(pk('add', R, R, Q+12)); A(pk('add', R+2, R+2, Q+14))
    A(pk('add', R, R, R+2))
    A(f"v_mul_f32 v{R}, {fh(0.125)}, v{R}\nv_mul_f32 v{R+1}, {fh(1/1024)}, v{R+1}")
    for k in range(8): A(f"v_sub_f32 v{Q+2*k}, v{Q+2*k}, v{R}")
    A(f"v_mul_f32 v{R+2}, v{Q}, v{Q}\nv_mul_f32 v{R+3}, v{Q+2}, v{Q+2}")
    for k in range(2, 8): A(f"v_fmac_f32 v{R+2+(k&1)}, v{Q+2*k}, v{Q+2*k}")
    A(f"v_add_f32 v{R+2}, v{R+2}, v{R+3}\nv_fmac_f32 v{R+1}, {fh(0.125)}, v{R+2}")
    A(f"v_cvt_pk_bf16_f32 v{R+2}, v{R}, v{R+1}\nv_lshlrev_b32 v{R}, 16, v{R+2}\nv_and_b32 v{R+1}, 0xffff0000, v{R+2}")
    A(f"v_add_f32 v{R+1}, {fh(1e-5)}, v{R+1}\nv_cvt_pk_bf16_f32 v{R+1}, v{R+1}, v{R+1}\nv_and_b32 v{R+1}, 0xffff0000, v{R+1}")
    A(f"v_sqrt_f32 v{R+1}, v{R+1}")
    for d in range(8): A(pk('add', X+2*d, X+2*d, R, sel='nl', neg=[0, 1]))
    A(f"v_cvt_pk_bf16_f32 v{R+1}, v{R+1}, v{R+1}\nv_and_b32 v{R+1}, 0xffff0000, v{R+1}\nv_rcp_f32 v{R+1}, v{R+1}")
    for d in range(8): A(f"v_cvt_pk_bf16_f32 v{108+d}, v{X+2*d}, v{X+2*d+1}")
    for d in range(8): A(f"v_lshlrev_b32 v{X+2*d}, 16, v{108+d}\nv_and_b32 v{X+1+2*d}, 0xffff0000, v{108+d}")
    for d in range(8): A(pk('mul', X+2*d, X+2*d, R, sel='nh'))
    for d in range(8): A(f"v_cvt_pk_bf16_f32 v{108+d}, v{X+2*d}, v{X+2*d+1}")
    A(f"s_mov_b32 s3, {WS_XN}\ns_mov_b32 s4, {WS_XN + 262144}")
    A("buffer_store_dwordx4 v[108:111], v102, s[8:11], s3 offen sc1\nbuffer_store_dwordx4 v[112:115], v102, s[8:11], s4 offen sc1")
    if kind == 0:
        A("s_cmp_ge_u32 s26, 3\ns_cbranch_scc1 L2_lni3\ns_cmp_eq_u32 s26, 2\ns_cbranch_scc1 L2_lni2\nv_lshlrev_b32 v106, 2, v1\ns_cmp_eq_u32 s26, 1\ns_cbranch_scc1 L2_lni1")
        A(f"s_lshl_b32 s3, s27, 11\ns_lshl_b32 s4, s28, 8\ns_add_u32 s3, s3, s4\ns_add_u32 s3, s3, {WS_TBUF}\nv_mov_b32 v107, -1")
        A("buffer_store_dword v107, v106, s[8:11], s3 offen sc1\ns_branch L2_lni3")
        A(f"L2_lni1:\ns_lshl_b32 s3, s2, 5\ns_add_u32 s3, s3, {WS_FLAGS}\nv_mov_b32 v107, 0\ns_mov_b64 exec, 0xff")
        A("buffer_store_dword v107, v106, s[8:11], s3 offen\ns_mov_b64 exec, -1\ns_branch L2_lni3")
        A(f"L2_lni2:\nv_lshlrev_b32 v100, 3, v100\ns_mov_b32 s3, {WS_STATS}\ns_mov_b32 exec_lo, 0x01010101\ns_mov_b32 exec_hi, 0x01010101")
        A(f"buffer_store_dwordx2 v[{R}:{R+1}], v100, s[8:11], s3 offen\ns_mov_b64 exec, -1")
        A("L2_lni3:")

def g1_body(kind):
    prologue_dma, first_reads, stage, q, ND, dma = g1_loop(kind)
    F = P['fuse']
    def E(groups):
        for g in groups:
            for x in g: A(x)
    if F:
        srd(80, 50, 4 * MB)
        A("buffer_load_dwordx4 v[108:111], v101, s[80:83], 0 offen\nbuffer_load_dwordx4 v[112:115], v101, s[80:83], 0 offen offset:128")
    srd(8, 6, WS_SIZE)
    stamp(0, 1, 16, 25, 0)
    extra = 0; young = 0
    if not F:
        prologue_dma()
    def touch():
        A("buffer_load_dword v91, v90, s[84:87], s88 offen\ns_add_u32 s88, s88, s89")
    if kind == 0 and P['pf3']:
        A("s_cmp_eq_u32 s26, 1\ns_cselect_b32 s4, s34, s32\ns_cselect_b32 s5, s35, s33")
        A("s_cmp_eq_u32 s26, 2\ns_cselect_b32 s4, s36, s4\ns_cselect_b32 s5, s37, s5")
        A("s_cmp_eq_u32 s26, 3\ns_cselect_b32 s4, s38, s4\ns_cselect_b32 s5, s39, s5")
        srd(84, 4, 1024 * 7168)
        A(f"s_mov_b32 s89, 917504\ns_cmp_ge_u32 s26, 2\ns_cselect_b32 s86, {2*MB}, s86\ns_cselect_b32 s89, 256, s89")
        A("v_min_u32 v10, 27, v1\nv_mul_u32_u24 v11, 9363, v10\nv_lshrrev_b32 v11, 16, v11\nv_mul_u32_u24 v12, 7, v11\nv_sub_u32 v12, v10, v12")
        A("v_mul_u32_u24 v11, 7168, v11\nv_lshl_add_u32 v90, v12, 7, v11")
        A("s_and_b32 s4, s2, 7\ns_lshr_b32 s5, s2, 3\ns_mul_i32 s88, s4, 896\ns_mul_i32 s3, s5, 28672\ns_add_u32 s88, s88, s3")
        A("s_lshl_b32 s4, s4, 18\ns_lshl_b32 s5, s5, 13\ns_add_u32 s4, s4, s5\ns_cmp_ge_u32 s26, 2\ns_cselect_b32 s88, s4, s88\ns_cbranch_scc0 L2_pf3a")
        A("v_and_b32 v10, 1, v1\nv_bfe_u32 v11, v1, 1, 2\nv_lshlrev_b32 v11, 11, v11\nv_lshl_add_u32 v90, v10, 7, v11\nL2_pf3a:")
        if F: A("s_waitcnt vmcnt(0)")
        for _ in range(P['pfa']): touch()
        extra += P['pfa']; young += P['pfa']
    if kind == 1:
        srd(16, 44, 2048); srd(52, 46, 2048); srd(56, 48, 2048)
        A("v_and_b32 v10, 15, v1\ns_lshl_b32 s3, s27, 5\nv_add_u32 v10, s3, v10\nv_lshlrev_b32 v10, 1, v10")
        for b in range(2):
            A(f"buffer_load_ushort v{80+3*b}, v10, s[16:19], 0 offen offset:{32*b}")
            A(f"buffer_load_ushort v{81+3*b}, v10, s[52:55], 0 offen offset:{32*b}")
            A(f"buffer_load_ushort v{82+3*b}, v10, s[56:59], 0 offen offset:{32*b}")
        extra += 6
        young += 6
    if F:
        ln_phase(kind, young)
        extra = 0
    if P['pf2']:
        if kind == 1: A("s_mov_b32 s60, s62\ns_mov_b32 s61, s63")
        srd(68, 60, 2 * MB); srd(72, 64, 3584 * 2048)
        A("s_lshl_b32 s3, s2, 3\ns_add_u32 s3, s3, s25\ns_mul_i32 s76, s3, 3584")
        A("s_lshl_b32 s3, s2, 2\ns_add_u32 s3, s3, s26\ns_lshl_b32 s77, s3, 11")
        A("v_min_u32 v94, 27, v1\nv_lshlrev_b32 v94, 7, v94\nv_and_b32 v95, 15, v1\nv_lshlrev_b32 v95, 7, v95\ns_sub_u32 s78, 6, s26")
    A(f"v_add_u32 v5, {2*SLOT1}, v4")
    A("v_lshrrev_b32 v10, 4, v1\nv_bfe_u32 v11, v1, 2, 2\nv_and_b32 v12, 3, v1")
    A("v_and_b32 v13, 1, v10\nv_lshl_or_b32 v13, v13, 2, v11\nv_lshrrev_b32 v14, 1, v10\nv_lshl_or_b32 v13, v14, 4, v13")
    A(f"v_mul_u32_u24 v13, 224, v13\nv_lshl_add_u32 v13, v12, 3, v13\nv_add_u32 v6, {OFF_WG}, v13\nv_add_u32 v7, {2*SLOT1}, v6")
    if kind == 1:
        A("v_and_b32 v13, 15, v1\nv_lshrrev_b32 v14, 2, v13\nv_sub_u32 v14, 0, v14\nv_and_b32 v14, 3, v14\nv_xor_b32 v14, v14, v10")
        A(f"v_lshlrev_b32 v13, 6, v13\nv_lshl_add_u32 v13, v14, 4, v13\nv_add_u32 v8, {OFF_B}, v13\nv_add_u32 v9, {2*SLOT1}, v8")
    if kind == 1:
        A(f"s_lshl_b32 s3, s26, 8\ns_add_u32 s3, s3, {G1_SCR}\nv_lshlrev_b32 v13, 2, v1\nv_add_u32 v13, s3, v13\nv_mov_b32 v14, -1\nds_write_b32 v13, v14")
    A(f"s_lshl_b32 s41, s28, 1\ns_lshr_b32 s3, s26, 1\ns_add_u32 s41, s41, s3\ns_lshl_b32 s41, s41, 14\ns_and_b32 s3, s26, 1\ns_lshl_b32 s3, s3, 11\ns_add_u32 s41, s41, s3\ns_add_u32 s41, s41, {WS_ACT}")
    A(f"s_mul_i32 s40, s27, 7\ns_add_u32 s40, s40, {128 + (5 if kind else 0)}")
    A(f"s_lshl_b32 s43, s27, 11\ns_add_u32 s43, s43, {WS_TBUF}")
    npre = P['pfa']
    if F:
        if P['dbg'] == 5: stamp(1, 3, 16, 25, 4)
        A("s_waitcnt vmcnt(0) lgkmcnt(0)\ns_barrier")
        if P['dbg'] == 5: stamp(2, 3, 16, 25, 4)
        srd(80, 66, 256)
        A("s_lshl_b32 s29, s28, 5")
        if kind == 0:
            A("s_cmp_lg_u32 s26, 0\ns_cbranch_scc1 L2_nosig\nv_mov_b32 v10, 1\ns_mov_b64 exec, 1\nbuffer_atomic_add v10, off, s[80:83], s29 sc1\ns_mov_b64 exec, -1\nL2_nosig:")
            for sl in range(4): E(dma(sl))
            A("s_barrier")
            A("s_waitcnt vmcnt(12)\ns_barrier")
            if P['pf3']:
                for _ in range(P['pfb']): touch()
        else:
            for sl in range(4): E(dma(sl, 'b'))
            A("s_cmp_lg_u32 s26, 0\ns_cbranch_scc1 L2_xgot")
            A("s_mov_b32 s5, 0\nL2_xpoll:")
            A(f"s_sleep {P['slp']}\nbuffer_load_dword v10, off, s[80:83], s29 sc1\ns_waitcnt vmcnt(0)\nv_readfirstlane_b32 s3, v10\ns_cmp_ge_u32 s3, 32\ns_cbranch_scc1 L2_xgot\ns_add_u32 s5, s5, 1\ns_cmp_lt_u32 s5, 0x10000\ns_cbranch_scc1 L2_xpoll")
            A("L2_xgot:")
            A("s_barrier")
            if P['dbg'] == 5: stamp(3, 3, 16, 25, 4)
            E(dma(0, 'a')); E(dma(1, 'a'))
            A("s_waitcnt vmcnt(4)\ns_barrier")
        npre += P['pfb']
    else:
        A(f"s_waitcnt vmcnt({ND + extra}) lgkmcnt(0)\ns_barrier")
    stamp(1, 1, 16, 25, 0)
    if P['al'] & 1: A("; ALIGN8_ON")
    if P['prio'] == 1 + kind: A("s_setprio 1")
    first_reads()
    A("s_mov_b32 s24, 7")
    if F and kind == 0:
        stage(0, True, 2*ND + (P['pfb'] if P['pf3'] else 0), False, czero=True)
        stage(1, True, 2*ND + (P['pfb'] if P['pf3'] else 0), False)
    elif F:
        stage(0, True, 4, False, early=2, dslot=3, czero=True, epart='a', dpart='a')
        stage(1, True, 9, False, early=0)
    else:
        stage(0, True, ND + extra, False, early=2, dslot=3, czero=True)
        if P['pf3'] and kind == 0: touch(); npre += 1
        stage(1, True, 2*ND, False, early=0)
    A(f"s_branch L2_mid{kind}")
    A(f".p2align 4\nL2_loop{kind}:")
    if P['dbg'] == 2 and kind == 0: stamp(7, 3, 68, 26, 0, dyn=24)
    q.forget()
    if P['pf2']:
        A(f"s_cmp_lg_u32 s24, s78\ns_cbranch_scc1 L2_npf{kind}")
        A("buffer_load_dword v92, v94, s[72:75], s76 offen\nbuffer_load_dword v93, v95, s[68:71], s77 offen")
        A(f"L2_npf{kind}:")
    if P['pf3'] and kind == 0 and npre < 8:
        A(f"s_cmp_lt_u32 s24, {npre - 1}\ns_cbranch_scc1 L2_npf3")
        touch()
        A("L2_npf3:")
    for s in range(4):
        if s == 2:
            A(f"L2_mid{kind}:"); q.forget()
        stage(s, True, 2*ND, False)
    A(f"s_sub_u32 s24, s24, 1\ns_cmp_lg_u32 s24, 0\ns_cbranch_scc1 L2_loop{kind}")
    q.forget()
    fill = ssm_params() if kind == 1 else []
    c0 = -2 * 0.7978845608028654 * LOG2E
    T = 16
    tailf = ("v_and_b32 v12, 3, v1\nv_bfe_u32 v13, v1, 3, 1\nv_lshl_or_b32 v12, v13, 2, v12\nv_bfe_u32 v13, v1, 2, 1\nv_lshl_or_b32 v12, v13, 3, v12\n"
             "v_and_b32 v13, 48, v1\nv_or_b32 v12, v12, v13\nv_lshlrev_b32 v10, 4, v12\nv_xor_b32 v11, 128, v10\nv_add_u32 v11, 1024, v11\n"
             f"v_and_b32 v12, 15, v1\nv_lshlrev_b32 v12, 4, v12\nv_add_u32 v13, {G1_SCR}, v12\ns_lshl_b32 s3, s26, 8\nv_add_u32 v14, s3, v13").split('\n')
    fill += tailf
    nf = 4 if kind == 1 else 1
    if P['tail']:
        stage(0, False, 2*ND, False, fill=fill, nfill=nf)
        stage(1, False, 0, False, fill=fill, nfill=nf, post_bar=("s_setprio 2" if kind == 1 else None))
        for x in fill: A(x)
        stage(2, False, 0, False, bar=False); stage(3, False, 0, True)
    else:
        stage(0, False, 2*ND, False, fill=fill, nfill=nf); stage(1, False, ND, False, fill=fill, nfill=nf)
        for x in fill: A(x)
        stage(2, False, 0, False); stage(3, False, 0, True)
    A("; ALIGN8_OFF")
    stamp(2 + kind, 1, 16, 26, 0)
    A(f"v_mov_b32 v{T+20}, {fh(c0*0.044715)}\nv_mov_b32 v{T+21}, {fh(c0)}")
    if kind == 0:
        NPK[0] = P['npk'] & 1
        for j in range(5):
            gelu_pair(2*j, 2*j+1, T, 42)
        NPK[0] = 0
        stamp(4, 1, 16, 26, 0)
        return
    def seq(b, part):
        blk = 4 + 2*b + part
        return [acc(blk, i) + r for i in range(4) for r in range(4)]
    cur = {b: (seq(b,0)[0], seq(b,1)[0]) for b in range(2)}
    NPK[0] = (P['npk'] >> 1) & 1
    for j in range(1, 8):
        nx = {b: (48 + 8*(j&1) + 4*b, 50 + 8*(j&1) + 4*b) for b in range(2)}
        for b in range(2):
            A(pk('fma', nx[b][0], pr(b,0), cur[b][0], seq(b,0)[2*j], sel='hnn')); A(pk('fma', nx[b][1], pr(b,0), cur[b][1], seq(b,1)[2*j], sel='hnn'))
        for b in range(2):
            A(pk('fma', nx[b][0], pr(b,2), cur[b][1], nx[b][0], sel='hnn', neg=[1,0,0])); A(pk('fma', nx[b][1], pr(b,2), cur[b][0], nx[b][1], sel='hnn'))
        cur = nx
    for b in range(2):
        er, ei = cur[b]
        A(f"v_fma_f32 v{48+2*b}, v{pr(b,0)}, v{er}, v{er+1}\nv_fma_f32 v{49+2*b}, v{pr(b,0)}, v{ei}, v{ei+1}")
    for b in range(2):
        er, ei = cur[b]
        A(f"v_fma_f32 v{48+2*b}, -v{pr(b,2)}, v{ei}, v{48+2*b}\nv_fmac_f32 v{49+2*b}, v{pr(b,2)}, v{er}")
    for k in range(4): A(f"v_mov_b32 v{52+k}, v{48+k}")
    for k in range(4): A(f"v_permlane16_swap_b32 v{48+k}, v{52+k}")
    cma2([(56+2*b, pr(b,4), 48+2*b, 52+2*b, 72+2*b) for b in range(2)])
    for k in range(4): A(f"v_mov_b32 v{60+k}, v{56+k}")
    for k in range(4): A(f"v_permlane32_swap_b32 v{56+k}, v{60+k}")
    cma2([(64+2*b, pr(b,6), 56+2*b, 60+2*b, 72+2*b) for b in range(2)])
    for k in range(4): A(f"v_min_u32 v{64+k}, -2, v{64+k}")
    A("s_mov_b64 exec, 0xffff\nds_write_b128 v14, v[64:67]\ns_mov_b64 exec, -1")
    A("v_and_b32 v15, 32, v1\nv_cmp_ne_u32 vcc, 0, v15\nv_mov_b32 v15, 0")
    for k in range(4): A(f"v_cndmask_b32 v{68+k}, v15, v{56+k}, vcc")
    cma2([(60+2*b, pr(b,4), 68+2*b, 48+2*b, 72+2*b) for b in range(2)])
    A("v_and_b32 v15, 16, v1\nv_cmp_ne_u32 vcc, 0, v15")
    for k in range(4): A(f"v_cndmask_b32 v{68+k}, v{68+k}, v{60+k}, vcc")
    NPK[0] = 0
    def scale(b):
        cf = pr(b,12)
        for t in range(0, 16, 4):
            for u in range(2):
                re = seq(b,0)[t+2*u]
                A(pk('mul', 72+4*u, cf, re, sel='ln')); A(pk('mul', 74+4*u, cf, re, sel='hn'))
            for u in range(2):
                re, im = seq(b,0)[t+2*u], seq(b,1)[t+2*u]
                A(pk('fma', re, cf, im, 72+4*u, sel='hnn', neg=[1,0,0])); A(pk('fma', im, cf, im, 74+4*u, sel='lnn', neg=[1,0,1]))
        A(f"v_sub_f32 v72, 0, v{pr(b,2)}")
        for t in range(0, 16, 2):
            re, im = seq(b,0)[t], seq(b,1)[t]
            A(f"v_fmac_f32 v{re+1}, v{pr(b,0)}, v{re}\nv_fmac_f32 v{im+1}, v{pr(b,0)}, v{im}")
        for t in range(0, 16, 2):
            re, im = seq(b,0)[t], seq(b,1)[t]
            A(f"v_fmac_f32 v{re+1}, v{pr(b,2)}, v{im}\nv_fmac_f32 v{im+1}, v72, v{re}")
    A("L2_lspin:")
    for w in range(4): A(f"ds_read_b128 v[{48+4*w}:{51+4*w}], v13 offset:{256*w}")
    A("s_waitcnt lgkmcnt(0)")
    A("v_max_u32 v72, v48, v49")
    for k in range(2, 16, 2): A(f"v_max3_u32 v72, v72, v{48+k}, v{49+k}")
    A("v_cmp_eq_u32 vcc, -1, v72\ns_cbranch_vccnz L2_lspin")
    A("s_cmp_lg_u32 s26, 0\ns_cbranch_scc1 L2_nopub")
    for w in range(1, 4):
        cma2([(64+2*b, pr(b,8), (48 if w == 1 else 64)+2*b, 48+4*w+2*b, 72+2*b) for b in range(2)])
    for k in range(4): A(f"v_min_u32 v{64+k}, -2, v{64+k}")
    A("s_lshl_b32 s3, s28, 8\ns_add_u32 s3, s3, s43\ns_mov_b64 exec, 0xffff")
    A("buffer_store_dwordx4 v[64:67], v12, s[8:11], s3 offen sc1\ns_mov_b64 exec, -1")
    A("L2_nopub:")
    stamp(6, 1, 76, 26, 0)
    if F: A("v_and_b32 v44, 7, v1\nv_lshlrev_b32 v44, 5, v44\nbuffer_load_dword v45, v44, s[80:83], 0 offen sc1")
    scale(0); scale(1)
    gelu_pair(0, 1, T, 42)
    gelu_pair(2, 3, T, 42)
    stamp(7, 1, 76, 26, 0)
    for k in range(4): A(f"v_mov_b32 v{64+k}, 0")
    A("s_cmp_eq_u32 s28, 0\ns_cbranch_scc1 L2_nocarry")
    A("s_sub_u32 s4, s28, 1\ns_mov_b32 s5, 0")
    TB = 16
    if F:
        A("L2_cchk:\ns_waitcnt vmcnt(0)\nv_cmp_gt_u32 vcc, 32, v45\ns_cbranch_vccz L2_poll")
        A("buffer_load_dword v45, v44, s[80:83], 0 offen sc1\ns_add_u32 s5, s5, 1\ns_cmp_lt_u32 s5, 0x10000\ns_cbranch_scc1 L2_cchk")
    A("L2_poll:")
    for j in range(7):
        A(f"s_min_u32 s3, s4, {j}\ns_lshl_b32 s3, s3, 8\ns_add_u32 s3, s3, s43")
        A(f"buffer_load_dwordx4 v[{TB+4*j}:{TB+4*j+3}], v12, s[8:11], s3 offen sc1")
    A("s_waitcnt vmcnt(0)")
    A(f"v_max_u32 v72, v{TB}, v{TB+1}")
    for k in range(2, 28, 2): A(f"v_max3_u32 v72, v72, v{TB+k}, v{TB+k+1}")
    A("v_cmp_eq_u32 vcc, -1, v72\ns_cbranch_vccz L2_got\ns_sleep 1\ns_add_u32 s5, s5, 1\ns_cmp_lt_u32 s5, 0x10000\ns_cbranch_scc1 L2_poll")
    A("L2_got:")
    for k in range(4): A(f"v_mov_b32 v{64+k}, v{TB+k}")
    for j in range(1, 7):
        A(f"s_cmp_le_u32 s28, {j}\ns_cbranch_scc1 L2_nocarry")
        cma2([(64+2*b, pr(b,10), 64+2*b, TB+4*j+2*b, 72+2*b) for b in range(2)])
    A("L2_nocarry:")
    for w in range(3):
        A(f"s_cmp_le_u32 s26, {w}\ns_cbranch_scc1 L2_hw")
        cma2([(64+2*b, pr(b,8), 64+2*b, 48+4*w+2*b, 72+2*b) for b in range(2)])
    A("L2_hw:")
    cma2([(64+2*b, pr(b,14), 64+2*b, 68+2*b, 72+2*b) for b in range(2)])
    for b in range(2):
        cr, ci = pr(b,12), pr(b,13); re, im = 64+2*b, 65+2*b
        A(f"v_mul_f32 v{72+2*b}, v{cr}, v{re}\nv_mul_f32 v{73+2*b}, v{ci}, v{re}")
    for b in range(2):
        cr, ci = pr(b,12), pr(b,13); re, im = 64+2*b, 65+2*b
        A(f"v_fma_f32 v{49+4*b}, -v{ci}, v{im}, v{72+2*b}\nv_fma_f32 v{51+4*b}, -v{cr}, v{im}, -v{73+2*b}")
    A("s_lshr_b32 s42, s27, 1\ns_lshl_b32 s42, s42, 18\ns_and_b32 s3, s27, 1\ns_lshl_b32 s3, s3, 13\ns_add_u32 s42, s42, s3\ns_add_u32 s42, s42, s41")
    n = 0
    for t in range(0, 16, 2):
        pv = {b: ((48+4*b, 50+4*b) if t == 0 else (seq(b,0)[t-2], seq(b,1)[t-2])) for b in range(2)}
        for b in range(2):
            re, im = seq(b,0)[t], seq(b,1)[t]
            A(pk('fma', re, pr(b,0), pv[b][0], re, sel='nhn')); A(pk('fma', im, pr(b,0), pv[b][1], im, sel='nhn'))
        for b in range(2):
            re, im = seq(b,0)[t], seq(b,1)[t]
            A(pk('fma', re, pr(b,2), pv[b][1], re, sel='nhn')); A(pk('fma', im, pr(b,2), pv[b][0], im, sel='nhn', neg=[1,0,0]))
        if t in (6, 14):
            h = t >> 3
            for b in range(2):
                for part in range(2):
                    sq = seq(b, part)
                    o = 16 + 4 * n; n += 1
                    A(f"s_add_u32 s3, s42, {part*16*262144 + b*4096}")
                    for k in range(4): A(f"v_cvt_pk_bf16_f32 v{o+k}, v{sq[8*h+2*k]}, v{sq[8*h+2*k+1]}")
                    A(f"buffer_store_dwordx4 v[{o}:{o+3}], v{10+h}, s[8:11], s3 offen{STF}")
    stamp(5, 1, 72, 26, 0)

def g2():
    assert 5 <= P['xat'] and P['xat'] - 2 <= 4 * (7 - P['pz']) - 1
    NA = 32 + XO; NBS = 56 - XO
    FR = [32, 64]; ACCO = 96; ACCY = 160; XR = 224; XA = 28
    kstart('k3_g2_kernel')
    A("s_cmp_ge_u32 s2, 256\ns_cbranch_scc1 L3_end")
    A("s_load_dwordx2 s[6:7], s[0:1], 120\ns_load_dwordx4 s[36:39], s[0:1], 40\ns_load_dwordx4 s[40:43], s[0:1], 96")
    A("s_load_dwordx2 s[44:45], s[0:1], 0\ns_load_dwordx2 s[46:47], s[0:1], 64")
    A("v_and_b32 v2, 63, v0\nv_lshrrev_b32 v1, 6, v0\nv_readfirstlane_b32 s26, v1")
    if P['mix']:
        A("s_bfe_u32 s27, s2, 0x10003\ns_lshr_b32 s29, s2, 4")
        A("s_and_b32 s30, s2, 3\ns_lshl_b32 s30, s30, 2\ns_and_b32 s31, s29, 3\ns_add_u32 s30, s30, s31")
        A("s_and_b32 s31, s2, 4\ns_lshr_b32 s32, s29, 2\ns_add_u32 s31, s31, s32")
    else:
        A("s_and_b32 s27, s2, 1\ns_bfe_u32 s28, s2, 0x20001\ns_lshr_b32 s29, s2, 3")
        A("s_and_b32 s30, s28, 1\ns_lshl_b32 s30, s30, 3\ns_and_b32 s31, s29, 7\ns_add_u32 s30, s30, s31")
        A("s_lshr_b32 s31, s28, 1\ns_lshl_b32 s31, s31, 2\ns_lshr_b32 s32, s29, 3\ns_add_u32 s31, s31, s32")
    A("s_waitcnt lgkmcnt(0)")
    srd(8, 6, WS_SIZE)
    stamp(0, 2, 16, 26, 0)
    A("s_cmp_ge_u32 s26, 4\ns_cbranch_scc1 L3_loader")
    A("s_and_b32 s48, s26, 1\ns_lshr_b32 s49, s26, 1")
    A("v_lshrrev_b32 v6, 4, v2\nv_bfe_u32 v7, v2, 2, 2\nv_and_b32 v8, 3, v2")
    A("v_lshrrev_b32 v9, 1, v6\nv_lshlrev_b32 v9, 12, v9\ns_lshl_b32 s3, s48, 11\nv_add_u32 v9, s3, v9")
    A("v_lshrrev_b32 v3, 1, v8\nv_lshl_add_u32 v9, v3, 10, v9")
    A("v_and_b32 v4, 1, v6\nv_lshl_or_b32 v4, v4, 2, v7")
    A("v_lshl_or_b32 v5, v3, 3, v4\nv_lshl_add_u32 v9, v5, 4, v9")
    A("v_and_b32 v5, 1, v8\nv_lshl_add_u32 v10, v5, 3, v9\nv_xor_b32 v11, 128, v10")
    A("v_lshl_add_u32 v9, v6, 3, v7\nv_lshlrev_b32 v9, 8, v9\nv_lshl_add_u32 v9, v8, 3, v9\nv_add_u32 v9, 16384, v9")
    for n in range(4):
        A(f"s_lshl_b32 s3, s49, 2\ns_add_u32 s3, s3, {n}\nv_xor_b32 v5, s3, v4\nv_lshl_add_u32 v{12+n}, v5, 5, v9")
    A("v_and_b32 v5, 15, v2\nv_and_b32 v9, 7, v2\nv_xor_b32 v9, v9, v6\nv_lshlrev_b32 v9, 4, v9\nv_lshl_add_u32 v9, v5, 7, v9")
    A("s_lshl_b32 s3, s49, 13\ns_add_u32 s3, s3, 16384\nv_add_u32 v16, s3, v9\nv_xor_b32 v17, 64, v16")
    for r in range(8): A(f"v_add_u32 v{18+r}, 0x10000, v{10+r}")
    A(f"s_lshl_b32 s50, s30, 3\ns_add_u32 s50, s50, s31\ns_lshl_b32 s51, s50, 16\ns_lshl_b32 s3, s26, 14\ns_add_u32 s51, s51, s3\ns_add_u32 s51, s51, {WS_OBUF}")
    A(f"s_lshl_b32 s52, s50, 6\ns_lshl_b32 s3, s26, 4\ns_add_u32 s52, s52, s3\ns_add_u32 s52, s52, {WS_FLAGS}")
    q = LQ()
    def reads(typ, slot, hh, buf):
        ab = 10 + 8 * (slot >> 1); so = (slot & 1) * 32768; f = FR[buf]
        def ra(i):
            off = so + hh * 8192 + 256 * i
            return [((buf, 'a', i, 0), f"ds_read_b64_tr_b16 v[{f+4*i}:{f+4*i+1}], v{ab} offset:{off}"),
                    ((buf, 'a', i), f"ds_read_b64_tr_b16 v[{f+4*i+2}:{f+4*i+3}], v{ab+1} offset:{off}")]
        def rb(n):
            g = f + 16 + 4 * n
            if typ == 'o':
                off = so + hh * 8192
                return [((buf, 'b', n, 0), f"ds_read_b64_tr_b16 v[{g}:{g+1}], v{ab+2+n} offset:{off}"),
                        ((buf, 'b', n), f"ds_read_b64_tr_b16 v[{g+2}:{g+3}], v{ab+2+n} offset:{off+1024}")]
            return [((buf, 'b', n), f"ds_read_b128 v[{g}:{g+3}], v{ab+6+hh} offset:{so + 2048*n}")]
        return ra(0) + rb(0) + ra(1) + ra(2) + ra(3) + rb(1) + rb(2) + rb(3)
    def half(typ, buf, rds, bar):
        accb = ACCO if typ == 'o' else ACCY
        f = FR[buf]; start = 0
        for n in range(4):
            for i in range(4):
                k = n * 4 + i
                if bar and k == P['barpos']:
                    if not P['g2x'] & 2:
                        A("s_waitcnt lgkmcnt(0)"); q.all_done()
                    A("s_barrier")
                if P['g2x'] & 4: pass
                elif P['fw']:
                    if k == 0: q.wait((buf, 'a', 3), (buf, 'b', 0))
                    elif k == 4: q.wait((buf, 'b', 1))
                    elif k == 8: q.wait((buf, 'b', 3))
                else:
                    q.wait((buf, 'a', i), (buf, 'b', n))
                ii = 3 - i if (P['snake'] and n & 1) else i
                a = accb + (n * 4 + ii) * 4
                A(f"v_mfma_f32_16x16x32_bf16 v[{a}:{a+3}], v[{f+16+4*n}:{f+16+4*n+3}], v[{f+4*ii}:{f+4*ii+3}], v[{a}:{a+3}]")
                if bar and k < P['barpos']: continue
                left = 15 - k
                cnt = (len(rds) + left - 1) // left if left > 0 else len(rds)
                for _ in range(min(cnt, len(rds))):
                    t, x = rds.pop(0); q.issue(t, x)
        assert not rds
    A("v_and_b32 v5, 15, v2\ns_lshl_b32 s3, s30, 7\ns_lshl_b32 s4, s48, 6\ns_add_u32 s3, s3, s4\nv_add_u32 v5, s3, v5")
    A("s_lshl_b32 s3, s31, 7\ns_lshl_b32 s4, s49, 6\ns_add_u32 s3, s3, s4\nv_lshl_add_u32 v9, v6, 2, s3")
    A("v_lshlrev_b32 v26, 11, v5\nv_lshl_add_u32 v26, v9, 1, v26")
    A("v_lshlrev_b32 v27, 1, v26")
    A("v_and_b32 v3, 15, v2\nv_lshrrev_b32 v4, 1, v6\ns_lshl_b32 s3, s49, 3\nv_or_b32 v4, s3, v4\nv_xor_b32 v4, v4, v3\nv_lshlrev_b32 v4, 4, v4")
    A("v_lshl_add_u32 v4, v3, 8, v4\nv_and_b32 v3, 1, v6\nv_lshl_add_u32 v4, v3, 3, v4\ns_lshl_b32 s3, s48, 14\ns_add_u32 s3, s3, 131072\nv_add_u32 v4, s3, v4")
    for n in range(4): A(f"v_xor_b32 v{XA+n}, {32*n}, v4")
    A("s_cmp_lg_u32 s27, 0\ns_cbranch_scc1 L3_typeB")
    srd(16, 46, 2048)
    for r in range(64): A(f"v_mov_b32 v{ACCY+r}, 0")
    A("s_barrier")
    A(f"v_lshlrev_b32 v5, 3, v5\nv_lshlrev_b32 v9, 1, v9\ns_mov_b32 s3, {WS_STATS}")
    for i in range(4): A(f"buffer_load_dwordx2 v[{ACCO+2*i}:{ACCO+1+2*i}], v5, s[8:11], s3 offen offset:{128*i}")
    for n in range(4): A(f"buffer_load_dwordx2 v[{ACCO+8+2*n}:{ACCO+9+2*n}], v9, s[16:19], 0 offen offset:{32*n}")
    stamp(1, 2, 64, 26, 0)
    if P['al'] & 2: A("; ALIGN8_ON")
    for t, x in reads('y', 0, 0, 0): q.issue(t, x)
    A("s_mov_b32 s24, 7")
    A(".p2align 4\nL3_yloop:")
    if P['dbg'] == 1: stamp(7, 3, 4, 26, 0, dyn=24)
    A(f"s_cmp_eq_u32 s24, {P['pz']}\ns_cbranch_scc1 L3_pause\nL3_back:")
    q.forget()
    for s in range(4):
        half('y', 0, reads('y', s, 1, 1), False)
        half('y', 1, reads('y', (s+1) & 3, 0, 0), True)
    A("s_sub_u32 s24, s24, 1\ns_cmp_lg_u32 s24, 0\ns_cbranch_scc1 L3_yloop")
    q.forget()
    for s in range(4):
        half('y', 0, reads('y', s, 1, 1), False)
        half('y', 1, reads('y' if s < 3 else 'o', (s+1) & 3, 0, 0), True)
    stamp(6, 2, 4, 26, 0)
    A(f"s_mov_b32 s24, {XO}\ns_branch L3_oloop")
    A("L3_pause:\ns_nop 7")
    stamp(4, 2, 4, 26, 0)
    for n in range(4):
        A("s_waitcnt lgkmcnt(8)")
        for i in range(4):
            r = XR + (n * 4 + i) * 2
            A(f"ds_read_b64 v[{r}:{r+1}], v{XA+n} offset:{4096*i}")
    A("s_waitcnt vmcnt(0)")
    DF = ACCO + 16; TT = ACCO + 32
    for i in range(4): A(f"v_mul_f32 v{ACCO+2*i}, v{ACCO+2*i}, v{ACCO+1+2*i}")
    for n in range(4):
        for hw in range(2):
            A(f"v_lshlrev_b32 v{DF+4*n+2*hw}, 16, v{ACCO+8+2*n+hw}\nv_and_b32 v{DF+1+4*n+2*hw}, 0xffff0000, v{ACCO+8+2*n+hw}")
    A("s_waitcnt lgkmcnt(0)")
    for n in range(4):
        for i in range(4):
            r = XR + (n * 4 + i) * 2; a = ACCY + (n * 4 + i) * 4; t = TT + 4 * (i & 1)
            for hw in range(2):
                A(f"v_lshlrev_b32 v{t+2*hw}, 16, v{r+hw}\nv_and_b32 v{t+2*hw+1}, 0xffff0000, v{r+hw}")
            for hw in range(2): A(pk('fma', t+2*hw, t+2*hw, ACCO+2*i, ACCO+2*i, sel='nhl', neg=[0,0,1]))
            for hw in range(2): A(pk('fma', a+2*hw, t+2*hw, DF+4*n+2*hw, a+2*hw))
    for r in range(64): A(f"v_mov_b32 v{ACCO+r}, 0")
    stamp(5, 2, 4, 26, 0)
    A("s_nop 1\ns_branch L3_back")
    A("L3_typeB:")
    for r in range(64): A(f"v_mov_b32 v{ACCO+r}, 0")
    A("s_barrier")
    stamp(1, 2, 64, 26, 0)
    for t, x in reads('o', 0, 0, 0): q.issue(t, x)
    A(f"s_mov_b32 s24, {NBS}")
    A(".p2align 4\nL3_oloop:")
    q.forget()
    for s in range(4):
        half('o', 0, reads('o', s, 1, 1), False)
        A("s_sub_u32 s24, s24, 1\ns_cmp_eq_u32 s24, 0\ns_cbranch_scc1 L3_otail")
        half('o', 1, reads('o', (s+1) & 3, 0, 0), True)
    A("s_branch L3_oloop")
    A("L3_otail:")
    A("s_waitcnt lgkmcnt(0)"); q.all_done()
    half('o', 1, [], False)
    A("; ALIGN8_OFF")
    stamp(2, 2, 4, 26, 0)
    A("v_lshlrev_b32 v5, 4, v2\nv_mov_b32 v9, 0")
    A("s_cmp_eq_u32 s27, 0\ns_cbranch_scc1 L3_finish")
    for k in range(16):
        if k % 4 == 0 and k: A("s_add_u32 s51, s51, 4096")
        A(f"buffer_store_dwordx4 v[{ACCO+4*k}:{ACCO+4*k+3}], v5, s[8:11], s51 offen offset:{1024*(k%4)} sc1")
    A("v_mov_b32 v3, 1\ns_waitcnt vmcnt(0)\ns_mov_b64 exec, 1")
    A("buffer_store_dword v3, v9, s[8:11], s52 offen sc1\ns_mov_b64 exec, -1")
    stamp(3, 2, 4, 26, 0)
    A("s_branch L3_end")
    A("L3_finish:")
    srd(16, 42, 8 * MB)
    A(f"s_lshr_b32 s3, s26, 1\ns_add_u32 s3, s3, {NA}\ns_and_b32 s3, s3, 3\ns_lshl_b32 s3, s3, 15\ns_and_b32 s4, s26, 1\ns_lshl_b32 s4, s4, 14\ns_add_u32 s3, s3, s4\nv_add_u32 v5, s3, v5")
    A(f"v_mov_b32 v28, {fh(-LOG2E)}")
    if P['dbg'] == 3: A("v_and_b32 v27, 0x7f03ff, v27\nv_and_b32 v27, 0xffffff00, v27\nv_lshl_add_u32 v27, v2, 4, v27")
    A("s_barrier")
    for k in range(8): A(f"ds_read_b128 v[{32+4*k}:{35+4*k}], v5 offset:{1024*k}")
    for n in range(4):
        for i in range(4):
            k = n * 4 + i
            o = ACCO + 4*k; y = ACCY + 4*k; p = 32 + 4*k; r = XR + 2*k
            if k < 8: A(f"ds_read_b128 v[{64+4*k}:{67+4*k}], v5 offset:{1024*(k+8)}\ns_waitcnt lgkmcnt(8)")
            else: A(f"s_waitcnt lgkmcnt({15-k})")
            for e in (0, 2): A(pk('add', o+e, o+e, p+e))
            for e in (0, 2): A(pk('mul', p+e, o+e, 28, sel='nl'))
            for e in range(4): A(f"v_exp_f32 v{p+e}, v{p+e}")
            for e in (0, 2): A(pk('mul', o+e, o+e, y+e))
            for e in (0, 2): A(pk('add', p+e, p+e, '1.0', sel='nl'))
            for e in range(4): A(f"v_rcp_f32 v{p+e}, v{p+e}")
            for hw in range(2): A(f"v_lshlrev_b32 v{y+2*hw}, 16, v{r+hw}\nv_and_b32 v{y+2*hw+1}, 0xffff0000, v{r+hw}")
            for e in (0, 2): A(pk('fma', y+e, o+e, p+e, y+e))
            A(f"s_mov_b32 s3, {65536*i}")
            A(f"buffer_store_dwordx4 v[{y}:{y+3}], v27, s[16:19], s3 offen offset:{(1024 if P['dbg'] == 3 else 64)*n}{OSTF}")
    stamp(3, 2, 4, 26, 0)
    A("s_branch L3_end")
    A("L3_loader:")
    A("s_sub_u32 s26, s26, 4")
    A("s_lshl_b32 s48, s26, 12\nv_lshlrev_b32 v3, 4, v2\nv_lshlrev_b32 v4, 4, v2\nv_add_u32 v3, s48, v3\nv_mov_b32 v20, 0")
    A(f"s_lshl_b32 s50, s30, 3\ns_add_u32 s50, s50, s31\ns_lshl_b32 s51, s50, 16\ns_lshl_b32 s3, s26, 14\ns_add_u32 s51, s51, s3\ns_add_u32 s51, s51, {WS_OBUF}")
    A(f"s_lshl_b32 s52, s50, 6\ns_lshl_b32 s3, s26, 4\ns_add_u32 s52, s52, s3\ns_add_u32 s52, s52, {WS_FLAGS}")
    A(f"s_lshr_b32 s3, s26, 1\ns_add_u32 s3, s3, {NA}\ns_and_b32 s3, s3, 3\ns_lshl_b32 s3, s3, 15\ns_and_b32 s4, s26, 1\ns_lshl_b32 s4, s4, 14\ns_add_u32 s55, s3, s4")
    A("v_lshrrev_b32 v5, 4, v2")
    for j in range(4):
        A(f"v_or_b32 v6, {((j>>1)&1)<<2}, v5\nv_bfe_u32 v7, v2, 1, 3\nv_xor_b32 v7, v7, v6\nv_lshlrev_b32 v7, 5, v7")
        A("v_and_b32 v8, 1, v2\nv_lshl_add_u32 v7, v8, 4, v7")
        A(f"s_lshl_b32 s3, s26, 4\ns_add_u32 s3, s3, {4*j}\nv_add_u32 v9, s3, v5\nv_lshl_add_u32 v{14+j}, v9, 11, v7")
        if j: A(f"v_subrev_u32 v{14+j}, {1024*j}, v{14+j}")
    A("v_lshrrev_b32 v5, 3, v2\nv_and_b32 v6, 7, v2\nv_xor_b32 v6, v6, v5\nv_lshlrev_b32 v6, 4, v6")
    for j in range(4):
        A(f"s_lshl_b32 s3, s26, 5\ns_add_u32 s3, s3, {8*j}\nv_add_u32 v9, s3, v5\nv_lshl_add_u32 v{10+j}, v9, 11, v6")
        if j: A(f"v_subrev_u32 v{10+j}, {1024*j}, v{10+j}")
    A(f"s_lshl_b32 s33, s30, 14\ns_add_u32 s33, s33, {WS_ACT}")
    A("s_mov_b32 s15, 0x20000\ns_mov_b32 s53, 0")
    A("s_cmp_lg_u32 s27, 0\ns_cbranch_scc1 L3_lB")
    A(f"s_mov_b32 s12, s36\ns_and_b32 s13, s37, 0xffff\ns_mov_b32 s14, {2*MB}\ns_lshl_b32 s34, s31, 18\ns_mov_b32 s35, 128")
    A(f"s_mov_b32 s54, 0\ns_mov_b32 s24, {NA-4}")
    if P['rot']:
        A("s_and_b32 s56, s30, 7\ns_lshl_b32 s56, s56, 1")
        A("s_lshl_b32 s3, s56, 7\ns_add_u32 s34, s34, s3\ns_lshl_b32 s3, s56, 18\ns_add_u32 s33, s33, s3")
        A("s_sub_u32 s57, 16, s56\ns_add_u32 s58, s57, 16")
    A("s_branch L3_lgo")
    A("L3_lB:")
    A(f"s_mov_b32 s12, s40\ns_and_b32 s13, s41, 0xffff\ns_mov_b32 s14, {3584*2048}\ns_lshl_b32 s34, s31, 8\ns_add_u32 s34, s34, {XO*131072}\ns_mov_b32 s35, 131072")
    for j in range(4): A(f"v_mov_b32 v{10+j}, v{14+j}")
    A("s_mov_b32 s56, 0\ns_mov_b32 s57, 0\ns_mov_b32 s58, 0")
    A(f"s_add_u32 s33, s33, {NA*262144}\ns_mov_b32 s54, 1000\ns_mov_b32 s24, {NBS-4}")
    A("L3_lgo:")
    def trace():
        if P['dbg'] != 6: return
        A("s_memrealtime s[92:93]\ns_waitcnt lgkmcnt(0)\ns_mov_b32 m0, s94\ns_nop 0\nv_writelane_b32 v40, s92, m0\ns_add_u32 s94, s94, 1")
    def trace_dump():
        if P['dbg'] != 6: return
        A(f"s_lshl_b32 s3, s2, 8\ns_add_u32 s3, s3, {WS_STAMP + 262144}\nv_lshlrev_b32 v41, 2, v2\nbuffer_store_dword v40, v41, s[8:11], s3 offen")
    if P['dbg'] == 6: A("s_mov_b32 s94, 0\nv_mov_b32 v40, 0")
    trace()
    def issue():
        if P['rot']:
            A("s_cmp_eq_u32 s54, s57\ns_cselect_b32 s3, 1, 0\ns_cmp_eq_u32 s54, s58\ns_cselect_b32 s3, 1, s3")
            A("s_lshl_b32 s4, s3, 11\ns_sub_u32 s34, s34, s4\ns_lshl_b32 s4, s3, 22\ns_sub_u32 s33, s33, s4")
        A("s_add_u32 m0, s48, s53")
        for j in range(4):
            if not P['g2x'] & 1: A(f"buffer_load_dwordx4 v3, s[8:11], s33 offen offset:{1024*j} lds")
        A("s_add_u32 m0, m0, 16384\ns_add_u32 s33, s33, 262144")
        for j in range(4):
            if not P['g2x'] & 1: A(f"buffer_load_dwordx4 v{10+j}, s[12:15], s34 offen offset:{1024*j} lds")
        A("s_add_u32 s34, s34, s35\ns_add_u32 s53, s53, 32768\ns_and_b32 s53, s53, 0x1ffff\ns_add_u32 s54, s54, 1")
    issue(); issue()
    srd(16, 44, 4 * MB)
    A("v_lshrrev_b32 v5, 4, v2\nv_and_b32 v6, 15, v2")
    for j in range(4):
        A(f"v_add_u32 v7, {4*j}, v5\nv_xor_b32 v8, v6, v7\nv_lshlrev_b32 v8, 4, v8\nv_lshl_add_u32 v{24+j}, v7, 11, v8")
        if j: A(f"v_subrev_u32 v{24+j}, {1024*j}, v{24+j}")
    A("s_lshl_b32 s59, s30, 18\ns_lshl_b32 s3, s26, 16\ns_add_u32 s59, s59, s3\ns_lshl_b32 s3, s31, 8\ns_add_u32 s59, s59, s3")
    A("s_lshl_b32 s60, s26, 13\ns_add_u32 s60, s60, 131072")
    if P['ls']:
        A("s_waitcnt vmcnt(8)\ns_barrier")
        trace()
        issue(); issue()
    else:
        issue(); issue()
        A("s_waitcnt vmcnt(24)\ns_barrier")
    A(".p2align 4\nL3_lloop:")
    A("s_cmp_eq_u32 s54, 16\ns_cbranch_scc0 L3_ln1")
    A("s_mov_b32 s12, s38\ns_and_b32 s13, s39, 0xffff")
    if P['rot']: A("s_add_u32 s33, s33, 4194304")
    else: A("s_lshl_b32 s34, s31, 18")
    A("L3_ln1:")
    A("s_cmp_eq_u32 s54, 32\ns_cbranch_scc0 L3_ln2")
    A(f"s_mov_b32 s12, s40\ns_and_b32 s13, s41, 0xffff\ns_mov_b32 s14, {3584*2048}\ns_lshl_b32 s34, s31, 8\ns_mov_b32 s35, 131072")
    if P['rot']: A(f"s_lshl_b32 s33, s30, 14\ns_add_u32 s33, s33, {WS_ACT + 32*262144}\ns_mov_b32 s58, 0")
    for j in range(4): A(f"v_mov_b32 v{10+j}, v{14+j}")
    A("L3_ln2:")
    A("s_waitcnt vmcnt(16)\ns_barrier")
    trace()
    issue()
    A(f"s_cmp_eq_u32 s54, {P['xat']}\ns_cbranch_scc0 L3_ln3")
    for hh in range(2):
        A(f"s_add_u32 m0, s60, {4096*hh}")
        for j in range(4): A(f"buffer_load_dwordx4 v{24+j}, s[16:19], s59 offen offset:{1024*j} lds")
        A("s_add_u32 s59, s59, 32768")
    A("L3_ln3:")
    A("s_sub_u32 s24, s24, 1\ns_cmp_lg_u32 s24, 0\ns_cbranch_scc1 L3_lloop")
    A("s_waitcnt vmcnt(16)\ns_barrier")
    A("s_cmp_eq_u32 s27, 0\ns_cbranch_scc1 L3_ltA")
    trace()
    A("s_waitcnt vmcnt(8)\ns_barrier"); trace(); A("s_waitcnt vmcnt(0)\ns_barrier"); trace(); trace_dump(); A("s_branch L3_end")
    A("L3_ltA:")
    def obuf_dma():
        for k in range(16):
            if k % 4 == 0:
                A(f"s_add_u32 m0, s55, {1024*k}")
                if k: A("s_add_u32 s51, s51, 4096")
            A(f"buffer_load_dwordx4 v4, s[8:11], s51 offen offset:{1024*(k%4)} sc1 lds")
    trace()
    A("buffer_load_dword v21, v20, s[8:11], s52 offen sc1")
    A("s_waitcnt vmcnt(9)\ns_barrier"); trace(); A("s_waitcnt vmcnt(0)")
    A("v_readfirstlane_b32 s3, v21\ns_cmp_eq_u32 s3, 1\ns_cbranch_scc0 L3_llate")
    obuf_dma()
    A("s_barrier\ns_branch L3_ldone")
    A("L3_llate:")
    A("s_barrier\ns_mov_b32 s5, 0")
    A("L3_poll:")
    A("buffer_load_dword v21, v20, s[8:11], s52 offen sc1\ns_waitcnt vmcnt(0)\nv_readfirstlane_b32 s3, v21\ns_cmp_eq_u32 s3, 1\ns_cbranch_scc1 L3_got\ns_sleep 1\ns_add_u32 s5, s5, 1\ns_cmp_lt_u32 s5, 0x10000\ns_cbranch_scc1 L3_poll")
    A("L3_got:")
    obuf_dma()
    A("L3_ldone:")
    trace()
    A("s_waitcnt vmcnt(0)"); trace(); A("s_barrier"); trace(); trace_dump()
    A("L3_end:\ns_endpgm")

header()
if not P['fuse']: k1()
if P['only'] != 1: g1()
if P['only'] == 0: g2()
A.raw('.section .rodata,"a"')
if not P['fuse']: kdesc('k1_ln_kernel', 88, 100)
if P['only'] != 1: kdesc('k2_g1_kernel', 256, 100)
if P['only'] == 0: kdesc('k3_g2_kernel', 256, 100)
txt = A.text()
if P['al']:
    import align8
    txt = align8.process(txt)
sys.stdout.write(txt)
```

```python
import sys, math, struct
from asmlib import Asm

P = dict(stamp=0, X=13, dbg=0, pf2=1, pf3=1, pfa=1, pfb=2, slp=6, npk=2, pz=6, tk1=1, tk2=1, pfc=1, st3=1, xfirst=0, wpre=4)
for a in sys.argv[1:]:
    k, v = a.split('='); assert k in P, k; P[k] = int(v)
STAMP = P['stamp']; XO = P['X']
OSTF = ['', ' sc1', ' nt'][P['st3']]

def f2u(x): return struct.unpack('<I', struct.pack('<f', x))[0]
def fh(x): return '0x%08x' % f2u(x)

MB = 1 << 20
WS_XN = 0
WS_STATS = 4 * MB
WS_TBUF = 4 * MB + 65536
WS_FLAGS = 4 * MB + 196608
WS_CNT2 = 4 * MB + 262144
WS_ACT = 8 * MB
WS_OBUF = 32 * MB
WS_STAMP = 48 * MB
WS_SIZE = 64 * MB
LOG2E = 1.4426950408889634
KX, KLRE, KLIM, KBRE, KBIM, KCRE, KCIM, KLDT, KDSK, KWG, KWU, KWD, KOUT, KDBG, KWS = 32, 34, 36, 38, 40, 42, 44, 46, 48, 52, 54, 56, 58, 60, 62

A = Asm()

def kstart(name):
    A.raw(f'.globl {name}\n.p2align 8\n.type {name},@function\n{name}:')
    A.reset()

def kdesc(name, vgpr, sgpr):
    A.raw(f'''.p2align 6
.amdhsa_kernel {name}
  .amdhsa_next_free_vgpr {vgpr}
  .amdhsa_next_free_sgpr {sgpr}
  .amdhsa_accum_offset {(vgpr+3)//4*4}
  .amdhsa_group_segment_fixed_size 0
  .amdhsa_kernarg_size 128
  .amdhsa_user_sgpr_count 2
  .amdhsa_user_sgpr_kernarg_segment_ptr 1
  .amdhsa_system_sgpr_workgroup_id_x 1
.end_amdhsa_kernel''')

def srd(d, b, size):
    A(f"s_mov_b32 s{d}, s{b}\ns_and_b32 s{d+1}, s{b+1}, 0xffff\ns_mov_b32 s{d+2}, {size}\ns_mov_b32 s{d+3}, 0x20000")

def stamp(slot, kid, tmpv, cond=None, wave=0, dyn=None):
    if not STAMP: return
    sp = 88
    lab = f"Lst_{kid}_{slot}_{len(A.lines)}"
    if cond is not None: A(f"s_cmp_lg_u32 s{cond}, {wave}\ns_cbranch_scc1 {lab}")
    A(f"s_memrealtime s[{sp}:{sp+1}]\ns_memtime s[{sp+2}:{sp+3}]\ns_waitcnt lgkmcnt(0)")
    A(f"s_lshl_b32 s{sp+4}, s2, 7\ns_add_u32 s{sp+4}, s{sp+4}, {WS_STAMP + kid*256*128 + slot*16}")
    if dyn is not None: A(f"s_lshl_b32 s{sp+5}, s{dyn}, 4\ns_sub_u32 s{sp+4}, s{sp+4}, s{sp+5}")
    A(f"v_mov_b32 v{tmpv}, s{sp}\nv_mov_b32 v{tmpv+1}, s{sp+1}\nv_mov_b32 v{tmpv+2}, s{sp+2}\nv_mov_b32 v{tmpv+3}, s{sp+3}")
    A(f"s_mov_b64 exec, 1\nbuffer_store_dwordx4 v[{tmpv}:{tmpv+3}], off, s[8:11], s{sp+4}\ns_mov_b64 exec, -1")
    A(f"{lab}:")

class LQ:
    def __init__(self): self.n = 0; self.tag = {}; self.done = 0
    def issue(self, tag, text):
        A(text); self.n += 1; self.tag[tag] = self.n
    def wait(self, *tags):
        need = max(self.tag[t] for t in tags)
        if need <= self.done: return
        c = self.n - need
        assert c <= 15
        A(f"s_waitcnt lgkmcnt({c})"); self.done = need
    def all_done(self): self.done = self.n
    def forget(self): self.done = 0

NPK = [0]
def pk(op, d, *srcs, sel=None, neg=None):
    n = len(srcs); sel = sel or 'n' * n; neg = neg or [0] * n
    t = [f"v[{x}:{x+1}]" if isinstance(x, int) else x for x in srcs]
    for x in srcs:
        if isinstance(x, int): assert x % 2 == 0, x
    assert d % 2 == 0
    lo = [{'n': 0, 'l': 0, 'h': 1, 'x': 1}[c] for c in sel]; hi = [{'n': 1, 'l': 0, 'h': 1, 'x': 0}[c] for c in sel]
    nl = [1 if c in (1, 'l') else 0 for c in neg]; nh = [1 if c in (1, 'h') else 0 for c in neg]
    if NPK[0]:
        out = []
        halves = [(0, lo, nl), (1, hi, nh)]
        srcs_hi = [x + hi[k] for k, x in enumerate(srcs) if isinstance(x, int)]
        srcs_lo = [x + lo[k] for k, x in enumerate(srcs) if isinstance(x, int)]
        if d in srcs_hi:
            assert d + 1 not in srcs_lo, "alias"
            halves = halves[::-1]
        for hf, sl, ng in halves:
            ops = [(('-' if ng[k] else '') + f"v{x+sl[k]}") if isinstance(x, int) else x for k, x in enumerate(srcs)]
            dd = f"v{d+hf}"
            if op == 'fma' and ops[2] == dd and not any(ng): out.append(f"v_fmac_f32 {dd}, {ops[0]}, {ops[1]}")
            elif op == 'fma': out.append(f"v_fma_f32 {dd}, " + ', '.join(ops))
            elif op == 'add' and ng[1] and not ng[0]: out.append(f"v_sub_f32 {dd}, {ops[0]}, {ops[1][1:]}")
            else:
                if not ops[1].startswith('v'): ops = ops[::-1]
                assert not any(ng)
                out.append(f"v_{op}_f32 {dd}, " + ', '.join(ops))
        return '\n'.join(out)
    f = lambda v: '[' + ','.join(map(str, v)) + ']'
    m = ''
    if any(lo): m += f" op_sel:{f(lo)}"
    if not all(hi): m += f" op_sel_hi:{f(hi)}"
    if any(nl): m += f" neg_lo:{f(nl)}"
    if any(nh): m += f" neg_hi:{f(nh)}"
    return f"v_pk_{op}_f32 v[{d}:{d+1}], " + ', '.join(t) + m

def cma2(args):
    l = [[pk('fma', t, a, b, c, sel='lnn'), pk('fma', d, a, b, t, sel='hxn', neg=['l', 0, 0])] for d, a, b, c, t in args]
    for k in range(2):
        for x in l: A(x[k])

def ticket_issue(srdn, shift, base):
    A("s_getreg_b32 s3, hwreg(HW_REG_XCC_ID)\ns_and_b32 s3, s3, 7")
    A(f"s_lshl_b32 s5, s3, {shift}\ns_add_u32 s5, s5, {base}\nv_mov_b32 v20, 1\ns_mov_b64 exec, 1")
    A(f"buffer_atomic_add v20, off, s[{srdn}:{srdn+3}], s5 sc0 sc1\ns_mov_b64 exec, -1")
def ticket_finish(srdn, shift, base, young, lab, ldsaddr):
    A(f"s_mov_b32 s4, 0\ns_waitcnt vmcnt({young})\n{lab}_chk:")
    A(f"v_readfirstlane_b32 s29, v20\ns_cmp_lt_u32 s29, 32\ns_cbranch_scc1 {lab}_ok")
    A(f"s_add_u32 s4, s4, 1\ns_cmp_ge_u32 s4, 8\ns_cbranch_scc1 {lab}_ok")
    A(f"s_add_u32 s3, s3, 1\ns_and_b32 s3, s3, 7\ns_lshl_b32 s5, s3, {shift}\ns_add_u32 s5, s5, {base}\nv_mov_b32 v20, 1\ns_mov_b64 exec, 1")
    A(f"buffer_atomic_add v20, off, s[{srdn}:{srdn+3}], s5 sc0 sc1\ns_mov_b64 exec, -1\ns_waitcnt vmcnt(0)\ns_branch {lab}_chk")
    A(f"{lab}_ok:\ns_lshl_b32 s29, s29, 3\ns_add_u32 s29, s29, s3\ns_and_b32 s29, s29, 255")
    A(f"v_mov_b32 v20, s29\nv_mov_b32 v21, {ldsaddr}\nds_write_b32 v21, v20\ns_waitcnt lgkmcnt(0)")
def ticket_read(ldsaddr, bar=True):
    if bar: A("s_barrier")
    A(f"v_mov_b32 v21, {ldsaddr}\nds_read_b32 v20, v21\ns_waitcnt lgkmcnt(0)\nv_readfirstlane_b32 s6, v20\ns_and_b32 s6, s6, 255")

SLOT1 = 34816
OFF_WG, OFF_WU, OFF_B = 16384, 23552, 30720
G1_SCR = 4 * SLOT1
G1_LDS = G1_SCR + 1024 + 512 + 64
TKL = G1_SCR + 1536
ACC = 96; AFR = 16; BFR = 48
def acc(b, i): return ACC + (b * 4 + i) * 4
PB = 224
def pr(b, k): return PB + 16 * b + k

def gelu_pair(bg, bu, T):
    K = T + 20
    A("s_lshr_b32 s66, s64, 2\ns_lshl_b32 s66, s66, 18\ns_and_b32 s3, s64, 3\ns_lshl_b32 s3, s3, 12\ns_add_u32 s66, s66, s3\ns_add_u32 s66, s66, s65\ns_add_u32 s64, s64, 1")
    for h in range(2):
        prs = [(acc(bg, 2*h + ii) + 2*k, acc(bu, 2*h + ii) + 2*k) for ii in range(2) for k in range(2)]
        for n, (g, u) in enumerate(prs): A(pk('mul', T+2*n, g, g))
        for n, (g, u) in enumerate(prs): A(pk('fma', T+2*n, T+2*n, K, K, sel='nlh'))
        for n, (g, u) in enumerate(prs): A(pk('mul', T+2*n, T+2*n, g))
        for n, (g, u) in enumerate(prs):
            A(f"v_exp_f32 v{T+2*n}, v{T+2*n}\nv_exp_f32 v{T+2*n+1}, v{T+2*n+1}")
            A(pk('mul', T+8+2*n, g, u))
        for n in range(4): A(pk('add', T+2*n, T+2*n, '1.0', sel='nl'))
        for e in range(8): A(f"v_rcp_f32 v{T+e}, v{T+e}")
        for n in range(4): A(pk('mul', T+8+2*n, T+8+2*n, T+2*n))
        o = acc(bg, 2 * h)
        for n in range(4): A(f"v_cvt_pk_bf16_f32 v{o+n}, v{T+8+2*n}, v{T+9+2*n}")
        A(f"buffer_store_dwordx4 v[{o}:{o+3}], v{10+h}, s[8:11], s66 offen sc1")

def g1_loop(kind):
    NBLK = 10 if kind == 0 else 8
    NBUF = 5 if kind == 0 else 8
    BAR = NBLK - 3
    ND = 4 if kind == 0 else 5
    q = LQ()
    def bfr(b): return BFR + (b % NBUF) * 4
    def rd_A(slot, par):
        return [(('A', par, i), f"ds_read_b128 v[{AFR+par*16+i*4}:{AFR+par*16+i*4+3}], v{4+(slot>>1)} offset:{(slot&1)*SLOT1 + i*1024}") for i in range(4)]
    def rd_B(slot, b):
        f = bfr(b); so = (slot & 1) * SLOT1
        if kind == 0 or b < 4:
            j = (b >> 1) + (0 if kind == 0 else 5)
            off = so + (b & 1) * 7168 + 32 * j
            return [(('B', b, 0), f"ds_read_b64_tr_b16 v[{f}:{f+1}], v{6+(slot>>1)} offset:{off}"),
                    (('B', b), f"ds_read_b64_tr_b16 v[{f+2}:{f+3}], v{6+(slot>>1)} offset:{off+1792}")]
        idx = ((b - 4) & 1) * 2 + ((b - 4) >> 1)
        return [(('B', b), f"ds_read_b128 v[{f}:{f+3}], v{8+(slot>>1)} offset:{so + idx*1024}")]
    def dma(slot, part='ab'):
        base = slot * SLOT1
        if kind == 0:
            return [[f"s_add_u32 m0, s22, {base + OFF_WG}", "buffer_load_dwordx4 v2, s[12:15], s20 offen lds"],
                    ["s_mov_b64 exec, s[30:31]", "buffer_load_dwordx4 v3, s[12:15], s20 offen offset:1024 lds", "s_mov_b64 exec, -1"],
                    [f"s_add_u32 m0, s22, {base + OFF_WU}", "buffer_load_dwordx4 v2, s[16:19], s20 offen lds"],
                    ["s_mov_b64 exec, s[30:31]", "buffer_load_dwordx4 v3, s[16:19], s20 offen offset:1024 lds", "s_mov_b64 exec, -1", "s_add_u32 s20, s20, 229376"]]
        la = [[f"s_add_u32 m0, s22, {base}", "buffer_load_dwordx4 v2, s[8:11], s20 offen sc1 lds"],
              ["buffer_load_dwordx4 v2, s[8:11], s20 offen offset:1024 sc1 lds"],
              ["buffer_load_dwordx4 v2, s[8:11], s20 offen offset:2048 sc1 lds"],
              ["buffer_load_dwordx4 v2, s[8:11], s20 offen offset:3072 sc1 lds", "s_add_u32 s20, s20, 131072"]]
        lb = [[f"s_add_u32 m0, s23, {base + OFF_B}", "buffer_load_dwordx4 v3, s[12:15], s21 offen lds", "s_add_u32 s21, s21, 64"]]
        return (la if 'a' in part else []) + (lb if 'b' in part else [])
    def first_reads():
        for t, x in rd_A(0, 0) + rd_B(0, 0) + rd_B(0, 1) + rd_B(0, 2) + rd_B(0, 3): q.issue(t, x)
    def stage(slot, do_dma, vm, last=False, bar=True, fill=None, nfill=0, post_bar=None, early=None, dslot=None, czero=False, epart='ab', dpart='ab'):
        par = slot & 1
        pend = dma(early, epart) if early is not None else []
        if dslot is None: dslot = slot
        for b in range(NBLK):
            rds = []
            if b + 4 < NBLK: rds = rd_B(slot, b + 4)
            if b == BAR and not last:
                if bar:
                    A(f"s_waitcnt vmcnt({vm}) lgkmcnt(0)"); q.all_done()
                    A("s_barrier")
                    if post_bar: A(post_bar)
                ns = (slot + 1) & 3
                rds = rd_A(ns, par ^ 1) + rd_B(ns, 0) + rd_B(ns, 1)
                assert not pend
                if do_dma: pend = dma(dslot, dpart)
            elif b > BAR and not last:
                rds = rd_B((slot + 1) & 3, b - BAR + 1)
            for i in range(4):
                if b == 0: q.wait(('A', par, i), ('B', b))
                else: q.wait(('B', b))
                ii = 3 - i if b & 1 else i
                a = acc(b, ii); fa = AFR + par * 16 + ii * 4; fb = bfr(b)
                A(f"v_mfma_f32_16x16x32_bf16 v[{a}:{a+3}], v[{fa}:{fa+3}], v[{fb}:{fb+3}], " + ("0" if czero else f"v[{a}:{a+3}]"))
                for _ in range((len(rds) + (3 - i)) // (4 - i)):
                    t, x = rds.pop(0); q.issue(t, x)
                for _ in range(nfill):
                    if fill: A(fill.pop(0))
                if pend and ((b > BAR and (i & 1)) or (b < BAR and i == 3)):
                    for x in pend.pop(0): A(x)
            if b == NBLK - 1:
                while pend:
                    for x in pend.pop(0): A(x)
    return first_reads, stage, q, ND, dma

def ssm_params():
    L = []
    def E(t): L.extend(t.split('\n'))
    for b in range(2):
        lr, li, ld = 80 + 3*b, 81 + 3*b, 82 + 3*b
        LR, LI = pr(b,0), pr(b,2)
        E(f"v_lshlrev_b32 v{lr}, 16, v{lr}\nv_lshlrev_b32 v{li}, 16, v{li}\nv_lshlrev_b32 v{ld}, 16, v{ld}")
        E(f"v_mul_f32 v{ld}, {fh(LOG2E)}, v{ld}\nv_exp_f32 v{ld}, v{ld}\nv_mul_f32 v14, v{lr}, v{lr}\nv_cvt_pk_bf16_f32 v{ld}, v{ld}, v{ld}\nv_and_b32 v{ld}, 0xffff0000, v{ld}")
        E(f"v_mul_f32 v10, v{ld}, v{lr}\nv_mul_f32 v10, {fh(LOG2E)}, v10\nv_exp_f32 v10, v10")
        E(f"v_mul_f32 v11, v{ld}, v{li}\nv_mul_f32 v11, {fh(1/(2*math.pi))}, v11\nv_rndne_f32 v12, v11\nv_sub_f32 v11, v11, v12")
        E(f"v_cos_f32 v12, v11\nv_sin_f32 v13, v11\nv_fmac_f32 v14, v{li}, v{li}\nv_rcp_f32 v11, v14")
        E(f"v_mul_f32 v{LR}, v10, v12\nv_mul_f32 v{LI}, v10, v13")
        E(f"v_add_f32 v10, -1.0, v{LR}\nv_add_f32 v11, v11, v11")
        E(f"v_mul_f32 v12, v10, v{lr}\nv_fmac_f32 v12, v{LI}, v{li}\nv_mul_f32 v{pr(b,12)}, v12, v11")
        E(f"v_mul_f32 v12, v{LI}, v{lr}\nv_fma_f32 v12, -v10, v{li}, v12\nv_mul_f32 v{pr(b,13)}, v12, v11")
        cur = (LR, LI)
        dsts = {2: (LR+1, LI+1), 16: (pr(b,4), pr(b,5)), 32: (pr(b,6), pr(b,7)), 64: (pr(b,8), pr(b,9)), 256: (pr(b,10), pr(b,11))}
        e = 1; tog = 0
        while e < 256:
            e *= 2
            d = dsts.get(e, (10 + 2*tog, 11 + 2*tog)); tog ^= 1
            E(f"v_mul_f32 v14, v{cur[1]}, v{cur[1]}\nv_mul_f32 v15, v{cur[0]}, v{cur[1]}")
            E(f"v_fma_f32 v{d[0]}, v{cur[0]}, v{cur[0]}, -v14\nv_add_f32 v{d[1]}, v15, v15")
            cur = d
        E("v_and_b32 v14, 32, v1\nv_cmp_ne_u32 vcc, 0, v14\nv_mov_b32 v14, 1.0\nv_mov_b32 v15, 0")
        E(f"v_cndmask_b32 v10, v14, v{pr(b,6)}, vcc\nv_cndmask_b32 v11, v15, v{pr(b,7)}, vcc")
        E("v_and_b32 v14, 16, v1\nv_cmp_ne_u32 vcc, 0, v14")
        E(f"v_mul_f32 v12, v10, v{pr(b,4)}\nv_fma_f32 v12, -v11, v{pr(b,5)}, v12\nv_mul_f32 v13, v10, v{pr(b,5)}\nv_fmac_f32 v13, v11, v{pr(b,4)}")
        E(f"v_cndmask_b32 v{pr(b,14)}, v10, v12, vcc\nv_cndmask_b32 v{pr(b,15)}, v11, v13, vcc")
    return L

def ln_phase(kind):
    X = 116; R = 132
    for d in range(8): A(f"v_lshlrev_b32 v{X+2*d}, 16, v{108+d}\nv_and_b32 v{X+1+2*d}, 0xffff0000, v{108+d}")
    A(pk('add', R, X, X+2)); A(pk('add', R+2, X+4, X+6))
    A(pk('add', R, R, X+8)); A(pk('add', R+2, R+2, X+10)); A(pk('add', R, R, X+12)); A(pk('add', R+2, R+2, X+14))
    A(pk('add', R, R, R+2)); A(f"v_add_f32 v{R}, v{R}, v{R+1}")
    def red8(v):
        A(f"v_add_f32_dpp v{v}, v{v}, v{v} quad_perm:[1,0,3,2] row_mask:0xf bank_mask:0xf")
        A(f"v_add_f32_dpp v{v}, v{v}, v{v} quad_perm:[2,3,0,1] row_mask:0xf bank_mask:0xf")
        A(f"v_add_f32_dpp v{v}, v{v}, v{v} row_half_mirror row_mask:0xf bank_mask:0xf")
    red8(R)
    A(f"v_mul_f32 v{R+4}, {fh(1/128)}, v{R}")
    for d in range(8): A(pk('add', R+8+2*d, X+2*d, R+4, sel='nl', neg=[0, 1]))
    A(pk('mul', R, R+8, R+8)); A(pk('mul', R+2, R+10, R+10))
    for d in range(2, 8): A(pk('fma', R+2*(d&1), R+8+2*d, R+8+2*d, R+2*(d&1)))
    A(pk('add', R, R, R+2)); A(f"v_add_f32 v{R+5}, v{R}, v{R+1}")
    red8(R+5)
    A(f"ds_write_b64 v107, v[{R+4}:{R+5}]\ns_waitcnt lgkmcnt(0)\ns_barrier")
    for k in range(4): A(f"ds_read_b128 v[{R+8+4*k}:{R+11+4*k}], v106 offset:{16*k}")
    A("s_waitcnt lgkmcnt(0)")
    Q = R + 8
    A(pk('add', R, Q, Q+2)); A(pk('add', R+2, Q+4, Q+6)); A(pk('add', R, R, Q+8)); A(pk('add', R+2, R+2, Q+10)); A(pk('add', R, R, Q+12)); A(pk('add', R+2, R+2, Q+14))
    A(pk('add', R, R, R+2))
    A(f"v_mul_f32 v{R}, {fh(0.125)}, v{R}\nv_mul_f32 v{R+1}, {fh(1/1024)}, v{R+1}")
    for k in range(8): A(f"v_sub_f32 v{Q+2*k}, v{Q+2*k}, v{R}")
    A(f"v_mul_f32 v{R+2}, v{Q}, v{Q}\nv_mul_f32 v{R+3}, v{Q+2}, v{Q+2}")
    for k in range(2, 8): A(f"v_fmac_f32 v{R+2+(k&1)}, v{Q+2*k}, v{Q+2*k}")
    A(f"v_add_f32 v{R+2}, v{R+2}, v{R+3}\nv_fmac_f32 v{R+1}, {fh(0.125)}, v{R+2}")
    A(f"v_cvt_pk_bf16_f32 v{R+2}, v{R}, v{R+1}\nv_lshlrev_b32 v{R}, 16, v{R+2}\nv_and_b32 v{R+1}, 0xffff0000, v{R+2}")
    A(f"v_add_f32 v{R+1}, {fh(1e-5)}, v{R+1}\nv_cvt_pk_bf16_f32 v{R+1}, v{R+1}, v{R+1}\nv_and_b32 v{R+1}, 0xffff0000, v{R+1}")
    A(f"v_sqrt_f32 v{R+1}, v{R+1}")
    for d in range(8): A(pk('add', X+2*d, X+2*d, R, sel='nl', neg=[0, 1]))
    A(f"v_cvt_pk_bf16_f32 v{R+1}, v{R+1}, v{R+1}\nv_and_b32 v{R+1}, 0xffff0000, v{R+1}\nv_rcp_f32 v{R+1}, v{R+1}")
    for d in range(8): A(f"v_cvt_pk_bf16_f32 v{108+d}, v{X+2*d}, v{X+2*d+1}")
    for d in range(8): A(f"v_lshlrev_b32 v{X+2*d}, 16, v{108+d}\nv_and_b32 v{X+1+2*d}, 0xffff0000, v{108+d}")
    for d in range(8): A(pk('mul', X+2*d, X+2*d, R, sel='nh'))
    for d in range(8): A(f"v_cvt_pk_bf16_f32 v{108+d}, v{X+2*d}, v{X+2*d+1}")
    A(f"s_mov_b32 s3, {WS_XN}\ns_mov_b32 s4, {WS_XN + 262144}")
    A("buffer_store_dwordx4 v[108:111], v102, s[8:11], s3 offen sc1\nbuffer_store_dwordx4 v[112:115], v102, s[8:11], s4 offen sc1")
    if kind == 0:
        A("s_cmp_lg_u32 s26, 3\ns_cbranch_scc1 L2_lni2")
        A(f"s_lshl_b32 s3, s2, 2\ns_add_u32 s3, s3, {WS_CNT2}\nv_mov_b32 v107, 0\ns_mov_b64 exec, 1\nbuffer_store_dword v107, off, s[8:11], s3\ns_mov_b64 exec, -1")
        A("L2_lni2:\ns_cmp_lg_u32 s26, 2\ns_cbranch_scc1 L2_lni3")
        A(f"v_lshlrev_b32 v100, 3, v100\ns_mov_b32 s3, {WS_STATS}\ns_mov_b32 exec_lo, 0x01010101\ns_mov_b32 exec_hi, 0x01010101")
        A(f"buffer_store_dwordx2 v[{R}:{R+1}], v100, s[8:11], s3 offen\ns_mov_b64 exec, -1")
        A("L2_lni3:")

def g1():
    kstart('k1_g1_kernel')
    A("s_cmp_ge_u32 s2, 256\ns_cbranch_scc1 L2_end")
    A("s_load_dwordx16 s[32:47], s[0:1], 0\ns_load_dwordx16 s[48:63], s[0:1], 64")
    A("v_and_b32 v1, 63, v0\nv_lshrrev_b32 v10, 6, v0\nv_readfirstlane_b32 s25, v10")
    A("s_lshr_b32 s7, s2, 5\ns_mov_b32 s30, -1\ns_mov_b32 s31, 0xffff")
    A("v_lshrrev_b32 v103, 3, v1\ns_and_b32 s3, s2, 1\ns_lshl_b32 s3, s3, 3\nv_add_u32 v103, s3, v103\nv_and_b32 v104, 7, v1")
    A("s_bfe_u32 s4, s2, 0x20001\ns_bfe_u32 s5, s2, 0x20003\ns_lshl_b32 s3, s7, 8\ns_lshl_b32 s29, s5, 6\ns_add_u32 s3, s3, s29\ns_lshl_b32 s29, s4, 2\ns_add_u32 s3, s3, s29")
    A("v_lshrrev_b32 v100, 2, v103\nv_lshlrev_b32 v100, 4, v100\nv_and_b32 v101, 3, v103\nv_add3_u32 v100, v100, v101, s3")
    A("s_lshl_b32 s3, s25, 8\nv_lshlrev_b32 v101, 11, v100\nv_lshl_add_u32 v101, v104, 4, v101\nv_add_u32 v101, s3, v101")
    A("s_lshl_b32 s20, s7, 14\ns_lshl_b32 s5, s5, 12\ns_add_u32 s20, s20, s5\ns_lshl_b32 s4, s4, 10\ns_add_u32 s20, s20, s4\ns_lshl_b32 s4, s25, 19\ns_add_u32 s20, s20, s4")
    A("s_and_b32 s26, s25, 3")
    A("s_waitcnt lgkmcnt(0)")
    srd(80, KX, 4 * MB); srd(96, KDBG, 256)
    XL = "buffer_load_dwordx4 v[108:111], v101, s[80:83], 0 offen\nbuffer_load_dwordx4 v[112:115], v101, s[80:83], 0 offen offset:128"
    A(XL)
    srd(8, KWS, WS_SIZE)
    stamp(0, 1, 16, 25, 0)
    A("v_lshrrev_b32 v102, 2, v104\nv_lshlrev_b32 v102, 17, v102\nv_and_b32 v105, 3, v104\nv_lshl_add_u32 v102, v105, 8, v102\nv_lshl_add_u32 v102, v103, 4, v102\nv_add_u32 v102, s20, v102")
    A(f"v_lshrrev_b32 v106, 3, v1\nv_lshlrev_b32 v106, 6, v106\nv_add_u32 v106, {G1_SCR+1024}, v106\ns_lshl_b32 s3, s25, 3\nv_add_u32 v107, s3, v106")
    A(f"s_lshl_b32 s3, s26, 12\nv_lshlrev_b32 v4, 4, v1\nv_add_u32 v4, s3, v4\nv_add_u32 v5, {2*SLOT1}, v4")
    A("v_lshrrev_b32 v10, 4, v1\nv_bfe_u32 v11, v1, 2, 2\nv_and_b32 v12, 3, v1")
    A("v_and_b32 v13, 1, v10\nv_lshl_or_b32 v13, v13, 2, v11\nv_lshrrev_b32 v14, 1, v10\nv_lshl_or_b32 v13, v14, 4, v13")
    A(f"v_mul_u32_u24 v13, 224, v13\nv_lshl_add_u32 v13, v12, 3, v13\nv_add_u32 v6, {OFF_WG}, v13\nv_add_u32 v7, {2*SLOT1}, v6")
    A("v_and_b32 v13, 15, v1\nv_lshrrev_b32 v14, 2, v13\nv_sub_u32 v14, 0, v14\nv_and_b32 v14, 3, v14\nv_xor_b32 v14, v14, v10")
    A(f"v_lshlrev_b32 v13, 6, v13\nv_lshl_add_u32 v13, v14, 4, v13\nv_add_u32 v8, {OFF_B}, v13\nv_add_u32 v9, {2*SLOT1}, v8")
    A("v_min_u32 v94, 27, v1\nv_lshlrev_b32 v94, 7, v94\nv_and_b32 v95, 15, v1\nv_lshlrev_b32 v95, 7, v95")
    A("s_cmp_ge_u32 s25, 4\ns_cbranch_scc1 L2_kind1")
    g1_body(0)
    A("s_branch L2_end")
    A("L2_kind1:")
    g1_body(1)
    A("L2_end:\ns_endpgm")

def g1_body(kind):
    first_reads, stage, q, ND, dma = g1_loop(kind)
    def E(groups):
        for g in groups:
            for x in g: A(x)
    def touch(): A("buffer_load_dword v91, v90, s[84:87], s94 offen\ns_add_u32 s94, s94, s95")
    PF3 = P['pf3'] and kind == 0
    def pf3_off(idr, chunk):
        A(f"s_and_b32 s4, s{idr}, 7\ns_lshr_b32 s5, s{idr}, 3\ns_mul_i32 s94, s4, 896\ns_mul_i32 s3, s5, 28672\ns_add_u32 s94, s94, s3")
        A("s_lshl_b32 s4, s4, 18\ns_lshl_b32 s5, s5, 13\ns_add_u32 s4, s4, s5\ns_cmp_ge_u32 s26, 2\ns_cselect_b32 s94, s4, s94")
        if chunk: A(f"s_mul_i32 s3, s95, {chunk}\ns_add_u32 s94, s94, s3")
    if kind == 0:
        A(f"s_cmp_eq_u32 s26, 1\ns_cselect_b32 s4, s{KWU}, s{KWG}\ns_cselect_b32 s5, s{KWU+1}, s{KWG+1}")
        A(f"s_cmp_eq_u32 s26, 2\ns_cselect_b32 s4, s{KBRE}, s4\ns_cselect_b32 s5, s{KBRE+1}, s5")
        A(f"s_cmp_eq_u32 s26, 3\ns_cselect_b32 s4, s{KBIM}, s4\ns_cselect_b32 s5, s{KBIM+1}, s5")
        srd(84, 4, 1024 * 7168)
        A(f"s_mov_b32 s95, 917504\ns_cmp_ge_u32 s26, 2\ns_cselect_b32 s86, {2*MB}, s86\ns_cselect_b32 s95, 256, s95")
        A("v_min_u32 v10, 27, v1\nv_mul_u32_u24 v11, 9363, v10\nv_lshrrev_b32 v11, 16, v11\nv_mul_u32_u24 v12, 7, v11\nv_sub_u32 v12, v10, v12")
        A("v_mul_u32_u24 v11, 7168, v11\nv_lshl_add_u32 v90, v12, 7, v11")
        A("s_cmp_ge_u32 s26, 2\ns_cbranch_scc0 L2_pf3a")
        A("v_and_b32 v10, 1, v1\nv_bfe_u32 v11, v1, 1, 2\nv_lshlrev_b32 v11, 11, v11\nv_lshl_add_u32 v90, v10, 7, v11\nL2_pf3a:")
        pf3_off(2, 0)
        srd(12, KWG, 1024 * 7168); srd(16, KWU, 1024 * 7168)
        A("s_mov_b32 s3, 4682")
        A("s_and_b32 s4, s26, 1\ns_lshl_b32 s4, s4, 2\ns_lshr_b32 s5, s26, 1\ns_lshl_b32 s5, s5, 4\ns_or_b32 s4, s4, s5")
        for v, add in ((2, 0), (3, 64)):
            A(f"v_add_u32 v10, {add}, v1\nv_mul_u32_u24 v11, s3, v10\nv_lshrrev_b32 v11, 16, v11")
            A("v_mul_u32_u24 v12, 14, v11\nv_sub_u32 v12, v10, v12")
            A("v_and_b32 v13, 3, v11\nv_lshrrev_b32 v11, 2, v11\nv_lshl_or_b32 v13, v11, 3, v13")
            A(f"v_or_b32 v13, s4, v13\nv_mul_u32_u24 v13, 7168, v13\nv_lshl_add_u32 v{v}, v12, 4, v13")
        A("v_subrev_u32 v3, 1024, v3\ns_mul_i32 s22, s26, 1792")
        A("s_waitcnt vmcnt(0)")
        if PF3:
            for _ in range(P['pfa']): touch()
    else:
        A("v_lshlrev_b32 v10, 2, v1\ns_cmp_eq_u32 s26, 1\ns_cbranch_scc1 L2_in1\ns_cmp_eq_u32 s26, 2\ns_cbranch_scc1 L2_in2\ns_cmp_eq_u32 s26, 3\ns_cbranch_scc1 L2_in3")
        A(f"s_lshl_b32 s3, s2, 8\ns_add_u32 s3, s3, {WS_TBUF}\nv_mov_b32 v11, -1\nbuffer_store_dword v11, v10, s[8:11], s3 offen sc1\ns_branch L2_in4")
        A(f"L2_in1:\ns_lshl_b32 s3, s2, 5\ns_add_u32 s3, s3, {WS_FLAGS}\nv_mov_b32 v11, 0\ns_mov_b64 exec, 0xff\nbuffer_store_dword v11, v10, s[8:11], s3 offen\ns_mov_b64 exec, -1\ns_branch L2_in4")
        A("L2_in2:")
        A("s_getpc_b64 s[16:17]\nL2_pc:\ns_sub_u32 s16, s16, L2_pc-k1_g1_kernel\ns_subb_u32 s17, s17, 0")
        A("s_lshr_b32 s3, s2, 3\ns_lshl_b32 s3, s3, 4\nv_and_b32 v11, 15, v1\nv_add_u32 v11, s3, v11\nv_lshlrev_b32 v11, 7, v11\ns_mov_b32 s3, L3_end-k1_g1_kernel\nv_min_u32 v11, s3, v11")
        if not P['pfc']: A("v_mov_b32 v11, 0")
        A("global_load_dword v91, v11, s[16:17]\ns_branch L2_in4")
        A("L2_in3:")
        ticket_issue(96, 5, 16)
        A("s_mov_b32 s79, s3")
        A("L2_in4:")
        A(f"s_lshl_b32 s3, s26, 8\ns_add_u32 s3, s3, {G1_SCR}\nv_add_u32 v13, s3, v10\nv_mov_b32 v14, -1\nds_write_b32 v13, v14")
        A(f"s_cmp_ge_u32 s26, 2\ns_cselect_b32 s4, s{KBIM}, s{KBRE}\ns_cselect_b32 s5, s{KBIM+1}, s{KBRE+1}")
        srd(12, 4, 2 * MB)
        A("v_mov_b32 v2, v4")
        A("v_lshrrev_b32 v10, 2, v1\nv_lshrrev_b32 v11, 4, v1\nv_sub_u32 v11, 0, v11\nv_xor_b32 v11, v11, v1\nv_and_b32 v11, 3, v11")
        A("s_and_b32 s4, s26, 1\ns_lshl_b32 s4, s4, 4\nv_add_u32 v10, s4, v10\nv_lshlrev_b32 v10, 11, v10\nv_lshl_add_u32 v3, v11, 4, v10")
        A("s_lshl_b32 s22, s26, 12\ns_lshl_b32 s23, s26, 10")
        A("s_waitcnt vmcnt(1)")
    if P['dbg'] == 5: stamp(0, 3, 16, 25, 4)
    ln_phase(kind)
    srd(68, KCIM if kind else KCRE, 2 * MB); srd(72, KWD, 3584 * 2048)
    A("s_lshl_b32 s3, s2, 3\ns_add_u32 s3, s3, s25\ns_mul_i32 s76, s3, 3584\ns_lshl_b32 s3, s2, 2\ns_add_u32 s3, s3, s26\ns_lshl_b32 s77, s3, 11\ns_sub_u32 s78, 6, s26")
    if kind == 1:
        A("s_cmp_lg_u32 s26, 3\ns_cbranch_scc1 L2_notk\ns_mov_b32 s3, s79")
        ticket_finish(96, 5, 16, 0, "L2_tk", TKL)
        A("L2_notk:")
    if P['dbg'] == 5: stamp(1, 3, 16, 25, 4)
    A("s_waitcnt vmcnt(0) lgkmcnt(0)")
    if kind == 0:
        A("s_barrier\ns_cmp_lg_u32 s26, 0\ns_cbranch_scc1 L2_nosig\ns_lshl_b32 s29, s7, 5\nv_mov_b32 v10, 1\ns_mov_b64 exec, 1\nbuffer_atomic_add v10, off, s[96:99], s29 sc1\ns_mov_b64 exec, -1\nL2_nosig:")
        ticket_read(TKL, False)
    else:
        ticket_read(TKL)
    if not P['tk1']: A("s_mov_b32 s6, s2")
    if P['dbg'] == 5: stamp(2, 3, 16, 25, 4)
    A("s_and_b32 s27, s6, 7\ns_lshl_b32 s27, s27, 2\ns_bfe_u32 s3, s6, 0x20003\ns_add_u32 s27, s27, s3\ns_lshr_b32 s28, s6, 5")
    if kind == 0: A("s_mul_i32 s20, s27, 224")
    else: A(f"s_lshl_b32 s20, s28, 14\ns_add_u32 s20, s20, {WS_XN}\ns_lshl_b32 s21, s27, 16")
    def late_setup():
        A(f"s_lshl_b32 s67, s27, 11\ns_add_u32 s67, s67, {WS_TBUF}")
        A(f"s_lshl_b32 s65, s28, 1\ns_lshr_b32 s3, s26, 1\ns_add_u32 s65, s65, s3\ns_lshl_b32 s65, s65, 14\ns_and_b32 s3, s26, 1\ns_lshl_b32 s3, s3, 11\ns_add_u32 s65, s65, s3\ns_add_u32 s65, s65, {WS_ACT}")
        A(f"s_mul_i32 s64, s27, 7\ns_add_u32 s64, s64, {128 + (5 if kind else 0)}")
        if kind == 0: pf3_off(6, P['pfa'])
        else:
            A("v_and_b32 v10, 15, v1\ns_lshl_b32 s3, s27, 5\nv_add_u32 v10, s3, v10\nv_lshlrev_b32 v10, 1, v10")
            for k, kp in enumerate((KLRE, KLIM, KLDT)):
                srd(16, kp, 2048)
                for b in range(2): A(f"buffer_load_ushort v{80+3*b+k}, v10, s[16:19], 0 offen offset:{32*b}")
    pfb = P['pfb'] if PF3 else 0
    WP = P['wpre']
    if kind == 0:
        for sl in range(WP): E(dma(sl))
        late_setup()
        A("s_barrier")
        for sl in range(WP, 4): E(dma(sl))
        A("s_waitcnt vmcnt(12)\ns_barrier")
        for _ in range(pfb): touch()
    else:
        for sl in range(4): E(dma(sl, 'b'))
        A("s_cmp_lg_u32 s26, 0\ns_cbranch_scc1 L2_xgot\ns_lshl_b32 s29, s28, 5\ns_mov_b32 s5, 0\nL2_xpoll:")
        A(f"s_sleep {P['slp']}\nbuffer_load_dword v10, off, s[96:99], s29 sc1\ns_waitcnt vmcnt(0)\nv_readfirstlane_b32 s3, v10\ns_cmp_ge_u32 s3, 32\ns_cbranch_scc1 L2_xgot\ns_add_u32 s5, s5, 1\ns_cmp_lt_u32 s5, 0x40000\ns_cbranch_scc1 L2_xpoll")
        A("L2_xgot:\ns_barrier")
        if P['dbg'] == 5: stamp(3, 3, 16, 25, 4)
        E(dma(0, 'a')); E(dma(1, 'a'))
        late_setup()
        A("s_waitcnt vmcnt(10)\ns_barrier")
    npre = P['pfa'] + P['pfb']
    stamp(1, 1, 16, 25, 0)
    first_reads()
    A("s_mov_b32 s24, 7")
    if kind == 0:
        stage(0, True, 2*ND + pfb, czero=True)
        stage(1, True, 2*ND + pfb)
    else:
        stage(0, True, 10, early=2, dslot=3, czero=True, epart='a', dpart='a')
        stage(1, True, 9, early=0)
    A(f"s_branch L2_mid{kind}")
    A(f".p2align 4\nL2_loop{kind}:")
    if P['dbg'] == 2 and kind == 0: stamp(7, 3, 68, 26, 0, dyn=24)
    q.forget()
    if P['pf2']:
        A(f"s_cmp_lg_u32 s24, s78\ns_cbranch_scc1 L2_npf{kind}")
        A("buffer_load_dword v92, v94, s[72:75], s76 offen\nbuffer_load_dword v93, v95, s[68:71], s77 offen")
        A(f"L2_npf{kind}:")
    if PF3 and npre < 8:
        A(f"s_cmp_lt_u32 s24, {npre - 1}\ns_cbranch_scc1 L2_npf3")
        touch()
        A("L2_npf3:")
    for s in range(4):
        if s == 2:
            A(f"L2_mid{kind}:"); q.forget()
        stage(s, True, 2*ND)
    A(f"s_sub_u32 s24, s24, 1\ns_cmp_lg_u32 s24, 0\ns_cbranch_scc1 L2_loop{kind}")
    q.forget()
    fill = ssm_params() if kind == 1 else []
    c0 = -2 * 0.7978845608028654 * LOG2E
    T = 16
    fill += ("v_and_b32 v12, 3, v1\nv_bfe_u32 v13, v1, 3, 1\nv_lshl_or_b32 v12, v13, 2, v12\nv_bfe_u32 v13, v1, 2, 1\nv_lshl_or_b32 v12, v13, 3, v12\n"
             "v_and_b32 v13, 48, v1\nv_or_b32 v12, v12, v13\nv_lshlrev_b32 v10, 4, v12\nv_xor_b32 v11, 128, v10\nv_add_u32 v11, 1024, v11\n"
             f"v_and_b32 v12, 15, v1\nv_lshlrev_b32 v12, 4, v12\nv_add_u32 v13, {G1_SCR}, v12\ns_lshl_b32 s3, s26, 8\nv_add_u32 v14, s3, v13").split('\n')
    nf = 4 if kind == 1 else 1
    stage(0, False, 2*ND, fill=fill, nfill=nf)
    stage(1, False, 0, fill=fill, nfill=nf, post_bar=("s_setprio 2" if kind == 1 else None))
    for x in fill: A(x)
    if kind == 1: A("v_and_b32 v86, 7, v1\nv_lshlrev_b32 v86, 5, v86\nbuffer_load_dword v87, v86, s[96:99], 0 offen sc1")
    stage(2, False, 0, bar=False); stage(3, False, 0, last=True)
    stamp(2 + kind, 1, 16, 26, 0)
    A(f"v_mov_b32 v{T+20}, {fh(c0*0.044715)}\nv_mov_b32 v{T+21}, {fh(c0)}")
    if kind == 0:
        NPK[0] = P['npk'] & 1
        for j in range(5): gelu_pair(2*j, 2*j+1, T)
        NPK[0] = 0
        stamp(4, 1, 16, 26, 0)
        return
    def seq(b, part): return [acc(4 + 2*b + part, i) + r for i in range(4) for r in range(4)]
    cur = {b: (seq(b,0)[0], seq(b,1)[0]) for b in range(2)}
    NPK[0] = (P['npk'] >> 1) & 1
    for j in range(1, 8):
        nx = {b: (48 + 8*(j&1) + 4*b, 50 + 8*(j&1) + 4*b) for b in range(2)}
        for b in range(2):
            A(pk('fma', nx[b][0], pr(b,0), cur[b][0], seq(b,0)[2*j], sel='hnn')); A(pk('fma', nx[b][1], pr(b,0), cur[b][1], seq(b,1)[2*j], sel='hnn'))
        for b in range(2):
            A(pk('fma', nx[b][0], pr(b,2), cur[b][1], nx[b][0], sel='hnn', neg=[1,0,0])); A(pk('fma', nx[b][1], pr(b,2), cur[b][0], nx[b][1], sel='hnn'))
        cur = nx
    for b in range(2):
        er, ei = cur[b]
        A(f"v_fma_f32 v{48+2*b}, v{pr(b,0)}, v{er}, v{er+1}\nv_fma_f32 v{49+2*b}, v{pr(b,0)}, v{ei}, v{ei+1}")
    for b in range(2):
        er, ei = cur[b]
        A(f"v_fma_f32 v{48+2*b}, -v{pr(b,2)}, v{ei}, v{48+2*b}\nv_fmac_f32 v{49+2*b}, v{pr(b,2)}, v{er}")
    for k in range(4): A(f"v_mov_b32 v{52+k}, v{48+k}")
    for k in range(4): A(f"v_permlane16_swap_b32 v{48+k}, v{52+k}")
    cma2([(56+2*b, pr(b,4), 48+2*b, 52+2*b, 72+2*b) for b in range(2)])
    for k in range(4): A(f"v_mov_b32 v{60+k}, v{56+k}")
    for k in range(4): A(f"v_permlane32_swap_b32 v{56+k}, v{60+k}")
    cma2([(64+2*b, pr(b,6), 56+2*b, 60+2*b, 72+2*b) for b in range(2)])
    for k in range(4): A(f"v_min_u32 v{64+k}, -2, v{64+k}")
    A("s_mov_b64 exec, 0xffff\nds_write_b128 v14, v[64:67]\ns_mov_b64 exec, -1")
    A("v_and_b32 v15, 32, v1\nv_cmp_ne_u32 vcc, 0, v15\nv_mov_b32 v15, 0")
    for k in range(4): A(f"v_cndmask_b32 v{68+k}, v15, v{56+k}, vcc")
    cma2([(60+2*b, pr(b,4), 68+2*b, 48+2*b, 72+2*b) for b in range(2)])
    A("v_and_b32 v15, 16, v1\nv_cmp_ne_u32 vcc, 0, v15")
    for k in range(4): A(f"v_cndmask_b32 v{68+k}, v{68+k}, v{60+k}, vcc")
    NPK[0] = 0
    A("s_mov_b32 s5, 0\nL2_cchk:\ns_waitcnt vmcnt(0)\nv_cmp_gt_u32 vcc, 32, v87\ns_cbranch_vccz L2_lspin")
    A("buffer_load_dword v87, v86, s[96:99], 0 offen sc1\ns_add_u32 s5, s5, 1\ns_cmp_lt_u32 s5, 0x40000\ns_cbranch_scc1 L2_cchk")
    A("L2_lspin:")
    for w in range(4): A(f"ds_read_b128 v[{48+4*w}:{51+4*w}], v13 offset:{256*w}")
    A("s_waitcnt lgkmcnt(0)\nv_max_u32 v72, v48, v49")
    for k in range(2, 16, 2): A(f"v_max3_u32 v72, v72, v{48+k}, v{49+k}")
    A("v_cmp_eq_u32 vcc, -1, v72\ns_cbranch_vccnz L2_lspin")
    A("s_cmp_lg_u32 s26, 0\ns_cbranch_scc1 L2_nopub")
    for w in range(1, 4):
        cma2([(64+2*b, pr(b,8), (48 if w == 1 else 64)+2*b, 48+4*w+2*b, 72+2*b) for b in range(2)])
    for k in range(4): A(f"v_min_u32 v{64+k}, -2, v{64+k}")
    A("s_lshl_b32 s3, s28, 8\ns_add_u32 s3, s3, s67\ns_mov_b64 exec, 0xffff")
    A("buffer_store_dwordx4 v[64:67], v12, s[8:11], s3 offen sc1\ns_mov_b64 exec, -1")
    A("L2_nopub:")
    stamp(6, 1, 76, 26, 0)
    for b in range(2):
        cf = pr(b,12)
        for t in range(0, 16, 4):
            for u in range(2):
                re = seq(b,0)[t+2*u]
                A(pk('mul', 72+4*u, cf, re, sel='ln')); A(pk('mul', 74+4*u, cf, re, sel='hn'))
            for u in range(2):
                re, im = seq(b,0)[t+2*u], seq(b,1)[t+2*u]
                A(pk('fma', re, cf, im, 72+4*u, sel='hnn', neg=[1,0,0])); A(pk('fma', im, cf, im, 74+4*u, sel='lnn', neg=[1,0,1]))
        A(f"v_sub_f32 v72, 0, v{pr(b,2)}")
        for t in range(0, 16, 2):
            re, im = seq(b,0)[t], seq(b,1)[t]
            A(f"v_fmac_f32 v{re+1}, v{pr(b,0)}, v{re}\nv_fmac_f32 v{im+1}, v{pr(b,0)}, v{im}")
        for t in range(0, 16, 2):
            re, im = seq(b,0)[t], seq(b,1)[t]
            A(f"v_fmac_f32 v{re+1}, v{pr(b,2)}, v{im}\nv_fmac_f32 v{im+1}, v72, v{re}")
    gelu_pair(0, 1, T)
    gelu_pair(2, 3, T)
    stamp(7, 1, 76, 26, 0)
    for k in range(4): A(f"v_mov_b32 v{64+k}, 0")
    A("s_cmp_eq_u32 s28, 0\ns_cbranch_scc1 L2_nocarry")
    A("s_sub_u32 s4, s28, 1\ns_mov_b32 s5, 0")
    TB = 16
    A("L2_poll:")
    for j in range(7):
        A(f"s_min_u32 s3, s4, {j}\ns_lshl_b32 s3, s3, 8\ns_add_u32 s3, s3, s67")
        A(f"buffer_load_dwordx4 v[{TB+4*j}:{TB+4*j+3}], v12, s[8:11], s3 offen sc1")
    A(f"s_waitcnt vmcnt(0)\nv_max_u32 v72, v{TB}, v{TB+1}")
    for k in range(2, 28, 2): A(f"v_max3_u32 v72, v72, v{TB+k}, v{TB+k+1}")
    A("v_cmp_eq_u32 vcc, -1, v72\ns_cbranch_vccz L2_got\ns_sleep 1\ns_add_u32 s5, s5, 1\ns_cmp_lt_u32 s5, 0x40000\ns_cbranch_scc1 L2_poll")
    A("L2_got:")
    for k in range(4): A(f"v_mov_b32 v{64+k}, v{TB+k}")
    for j in range(1, 7):
        A(f"s_cmp_le_u32 s28, {j}\ns_cbranch_scc1 L2_nocarry")
        cma2([(64+2*b, pr(b,10), 64+2*b, TB+4*j+2*b, 72+2*b) for b in range(2)])
    A("L2_nocarry:")
    for w in range(3):
        A(f"s_cmp_le_u32 s26, {w}\ns_cbranch_scc1 L2_hw")
        cma2([(64+2*b, pr(b,8), 64+2*b, 48+4*w+2*b, 72+2*b) for b in range(2)])
    A("L2_hw:")
    cma2([(64+2*b, pr(b,14), 64+2*b, 68+2*b, 72+2*b) for b in range(2)])
    for b in range(2): A(f"v_mul_f32 v{72+2*b}, v{pr(b,12)}, v{64+2*b}\nv_mul_f32 v{73+2*b}, v{pr(b,13)}, v{64+2*b}")
    for b in range(2): A(f"v_fma_f32 v{49+4*b}, -v{pr(b,13)}, v{65+2*b}, v{72+2*b}\nv_fma_f32 v{51+4*b}, -v{pr(b,12)}, v{65+2*b}, -v{73+2*b}")
    A("s_lshr_b32 s66, s27, 1\ns_lshl_b32 s66, s66, 18\ns_and_b32 s3, s27, 1\ns_lshl_b32 s3, s3, 13\ns_add_u32 s66, s66, s3\ns_add_u32 s66, s66, s65")
    n = 0
    for t in range(0, 16, 2):
        pv = {b: ((48+4*b, 50+4*b) if t == 0 else (seq(b,0)[t-2], seq(b,1)[t-2])) for b in range(2)}
        for b in range(2):
            re, im = seq(b,0)[t], seq(b,1)[t]
            A(pk('fma', re, pr(b,0), pv[b][0], re, sel='nhn')); A(pk('fma', im, pr(b,0), pv[b][1], im, sel='nhn'))
        for b in range(2):
            re, im = seq(b,0)[t], seq(b,1)[t]
            A(pk('fma', re, pr(b,2), pv[b][1], re, sel='nhn')); A(pk('fma', im, pr(b,2), pv[b][0], im, sel='nhn', neg=[1,0,0]))
        if t in (6, 14):
            h = t >> 3
            for b in range(2):
                for part in range(2):
                    sq = seq(b, part)
                    o = 16 + 4 * n; n += 1
                    A(f"s_add_u32 s3, s66, {part*16*262144 + b*4096}")
                    for k in range(4): A(f"v_cvt_pk_bf16_f32 v{o+k}, v{sq[8*h+2*k]}, v{sq[8*h+2*k+1]}")
                    A(f"buffer_store_dwordx4 v[{o}:{o+3}], v{10+h}, s[8:11], s3 offen sc1")
    stamp(5, 1, 72, 26, 0)

def g2():
    NA = 32 + XO; NBS = 56 - XO
    FR = [32, 64]; ACCO = 96; ACCY = 160; XR = 224; XA = 28
    XL = 131072
    kstart('k2_g2_kernel')
    A("s_cmp_ge_u32 s2, 256\ns_cbranch_scc1 L3_end")
    A("s_load_dwordx16 s[32:47], s[0:1], 0\ns_load_dwordx16 s[48:63], s[0:1], 64")
    A("v_and_b32 v2, 63, v0\nv_lshrrev_b32 v1, 6, v0\nv_readfirstlane_b32 s26, v1")
    def decode():
        A("s_and_b32 s27, s6, 1\ns_bfe_u32 s28, s6, 0x20001\ns_lshr_b32 s29, s6, 3")
        A("s_and_b32 s30, s28, 1\ns_lshl_b32 s30, s30, 3\ns_and_b32 s31, s29, 7\ns_add_u32 s30, s30, s31")
        A("s_lshr_b32 s31, s28, 1\ns_lshl_b32 s31, s31, 2\ns_lshr_b32 s3, s29, 3\ns_add_u32 s31, s31, s3")
    def exch(wreg):
        A(f"s_lshl_b32 s4, s30, 3\ns_add_u32 s4, s4, s31\ns_lshl_b32 s70, s4, 16\ns_lshl_b32 s3, s{wreg}, 14\ns_add_u32 s70, s70, s3\ns_add_u32 s70, s70, {WS_OBUF}")
        A(f"s_lshl_b32 s71, s4, 6\ns_lshl_b32 s3, s{wreg}, 4\ns_add_u32 s71, s71, s3\ns_add_u32 s71, s71, {WS_FLAGS}")
        A(f"s_lshr_b32 s3, s{wreg}, 1\ns_add_u32 s3, s3, {NA}\ns_and_b32 s3, s3, 3\ns_lshl_b32 s3, s3, 15\ns_and_b32 s4, s{wreg}, 1\ns_lshl_b32 s4, s4, 14\ns_add_u32 s72, s3, s4")
    def getid():
        if P['tk2']: ticket_read(XL)
        else: A("s_mov_b32 s6, s2")
        decode()
    A("s_cmp_ge_u32 s26, 4\ns_cbranch_scc1 L3_loader")
    A("s_waitcnt lgkmcnt(0)")
    srd(8, KWS, WS_SIZE)
    if P['tk2']:
        A("s_cmp_lg_u32 s26, 0\ns_cbranch_scc1 L3_notk")
        ticket_issue(8, 7, WS_CNT2)
        ticket_finish(8, 7, WS_CNT2, 0, "L3_tk", XL)
        A("L3_notk:")
    stamp(0, 2, 16, 26, 1)
    getid()
    A("s_and_b32 s64, s26, 1\ns_lshr_b32 s65, s26, 1")
    A("v_lshrrev_b32 v6, 4, v2\nv_bfe_u32 v7, v2, 2, 2\nv_and_b32 v8, 3, v2")
    A("v_and_b32 v5, 15, v2\ns_lshl_b32 s3, s30, 7\ns_lshl_b32 s4, s64, 6\ns_add_u32 s3, s3, s4\nv_add_u32 v5, s3, v5")
    A("s_lshl_b32 s3, s31, 7\ns_lshl_b32 s4, s65, 6\ns_add_u32 s3, s3, s4\nv_lshl_add_u32 v9, v6, 2, s3")
    A("v_lshlrev_b32 v27, 12, v5\nv_lshl_add_u32 v27, v9, 2, v27")
    ST = XR; DP = XR + 8
    A("s_cmp_lg_u32 s27, 0\ns_cbranch_scc1 L3_nost")
    srd(16, KDSK, 2048)
    A(f"v_lshlrev_b32 v5, 3, v5\nv_lshlrev_b32 v9, 1, v9\ns_mov_b32 s3, {WS_STATS}")
    for i in range(4): A(f"buffer_load_dwordx2 v[{ST+2*i}:{ST+1+2*i}], v5, s[8:11], s3 offen offset:{128*i}")
    for n in range(4): A(f"buffer_load_dwordx2 v[{DP+2*n}:{DP+1+2*n}], v9, s[16:19], 0 offen offset:{32*n}")
    A("L3_nost:")
    A("v_lshrrev_b32 v9, 1, v6\nv_lshlrev_b32 v9, 12, v9\ns_lshl_b32 s3, s64, 11\nv_add_u32 v9, s3, v9")
    A("v_lshrrev_b32 v3, 1, v8\nv_lshl_add_u32 v9, v3, 10, v9")
    A("v_and_b32 v4, 1, v6\nv_lshl_or_b32 v4, v4, 2, v7")
    A("v_lshl_or_b32 v5, v3, 3, v4\nv_lshl_add_u32 v9, v5, 4, v9")
    A("v_and_b32 v5, 1, v8\nv_lshl_add_u32 v10, v5, 3, v9\nv_xor_b32 v11, 128, v10")
    A("v_lshl_add_u32 v9, v6, 3, v7\nv_lshlrev_b32 v9, 8, v9\nv_lshl_add_u32 v9, v8, 3, v9\nv_add_u32 v9, 16384, v9")
    for n in range(4):
        A(f"s_lshl_b32 s3, s65, 2\ns_add_u32 s3, s3, {n}\nv_xor_b32 v5, s3, v4\nv_lshl_add_u32 v{12+n}, v5, 5, v9")
    A("v_and_b32 v5, 15, v2\nv_and_b32 v9, 7, v2\nv_xor_b32 v9, v9, v6\nv_lshlrev_b32 v9, 4, v9\nv_lshl_add_u32 v9, v5, 7, v9")
    A("s_lshl_b32 s3, s65, 13\ns_add_u32 s3, s3, 16384\nv_add_u32 v16, s3, v9\nv_xor_b32 v17, 64, v16")
    for r in range(8): A(f"v_add_u32 v{18+r}, 0x10000, v{10+r}")
    A("v_and_b32 v3, 15, v2\nv_lshrrev_b32 v4, 1, v6\ns_lshl_b32 s3, s65, 3\nv_or_b32 v4, s3, v4\nv_xor_b32 v4, v4, v3\nv_lshlrev_b32 v4, 4, v4")
    A(f"v_lshl_add_u32 v4, v3, 8, v4\nv_and_b32 v3, 1, v6\nv_lshl_add_u32 v4, v3, 3, v4\ns_lshl_b32 s3, s64, 14\ns_add_u32 s3, s3, {XL}\nv_add_u32 v4, s3, v4")
    for n in range(4): A(f"v_xor_b32 v{XA+n}, {32*n}, v4")
    exch(26)
    for r in range(0, 64, 2): A(f"v_pk_mov_b32 v[{ACCO+r}:{ACCO+r+1}], 0, 0")
    q = LQ()
    def reads(typ, slot, hh, buf):
        ab = 10 + 8 * (slot >> 1); so = (slot & 1) * 32768; f = FR[buf]
        def ra(i):
            off = so + hh * 8192 + 256 * i
            return [((buf, 'a', i, 0), f"ds_read_b64_tr_b16 v[{f+4*i}:{f+4*i+1}], v{ab} offset:{off}"),
                    ((buf, 'a', i), f"ds_read_b64_tr_b16 v[{f+4*i+2}:{f+4*i+3}], v{ab+1} offset:{off}")]
        def rb(n):
            g = f + 16 + 4 * n
            if typ == 'o':
                off = so + hh * 8192
                return [((buf, 'b', n, 0), f"ds_read_b64_tr_b16 v[{g}:{g+1}], v{ab+2+n} offset:{off}"),
                        ((buf, 'b', n), f"ds_read_b64_tr_b16 v[{g+2}:{g+3}], v{ab+2+n} offset:{off+1024}")]
            return [((buf, 'b', n), f"ds_read_b128 v[{g}:{g+3}], v{ab+6+hh} offset:{so + 2048*n}")]
        return ra(0) + rb(0) + ra(1) + ra(2) + ra(3) + rb(1) + rb(2) + rb(3)
    def half(typ, buf, rds, bar):
        accb = ACCO if typ == 'o' else ACCY
        f = FR[buf]
        for n in range(4):
            for i in range(4):
                k = n * 4 + i
                if bar and k == 4:
                    A("s_waitcnt lgkmcnt(0)"); q.all_done(); A("s_barrier")
                if k == 0: q.wait((buf, 'a', 3), (buf, 'b', 0))
                elif k == 4: q.wait((buf, 'b', 1))
                elif k == 8: q.wait((buf, 'b', 3))
                ii = 3 - i if n & 1 else i
                a = accb + (n * 4 + ii) * 4
                A(f"v_mfma_f32_16x16x32_bf16 v[{a}:{a+3}], v[{f+16+4*n}:{f+16+4*n+3}], v[{f+4*ii}:{f+4*ii+3}], v[{a}:{a+3}]")
                if bar and k < 4: continue
                left = 15 - k
                cnt = (len(rds) + left - 1) // left if left > 0 else len(rds)
                for _ in range(min(cnt, len(rds))):
                    t, x = rds.pop(0); q.issue(t, x)
        assert not rds
    A("s_cmp_lg_u32 s27, 0\ns_cbranch_scc1 L3_typeB")
    for r in range(0, 64, 2): A(f"v_pk_mov_b32 v[{ACCY+r}:{ACCY+r+1}], 0, 0")
    A("s_barrier")
    stamp(1, 2, 64, 26, 0)
    for t, x in reads('y', 0, 0, 0): q.issue(t, x)
    A("s_mov_b32 s24, 7")
    A(".p2align 4\nL3_yloop:")
    A(f"s_cmp_eq_u32 s24, {P['pz']}\ns_cbranch_scc1 L3_pause\nL3_back:")
    q.forget()
    for s in range(4):
        half('y', 0, reads('y', s, 1, 1), False)
        half('y', 1, reads('y', (s+1) & 3, 0, 0), True)
    A("s_sub_u32 s24, s24, 1\ns_cmp_lg_u32 s24, 0\ns_cbranch_scc1 L3_yloop")
    q.forget()
    for s in range(4):
        half('y', 0, reads('y', s, 1, 1), False)
        half('y', 1, reads('y' if s < 3 else 'o', (s+1) & 3, 0, 0), True)
    stamp(6, 2, 4, 26, 0)
    A(f"s_mov_b32 s24, {XO}\ns_branch L3_oloop")
    A("L3_pause:\ns_waitcnt vmcnt(0) lgkmcnt(0)")
    stamp(4, 2, 4, 26, 0)
    XB = FR[1]; DF = XR + 16; TT = XR + 20
    for n in range(4):
        for i in range(4): A(f"ds_read_b64 v[{XB+(n*4+i)*2}:{XB+(n*4+i)*2+1}], v{XA+n} offset:{4096*i}")
        if n == 2: A("s_waitcnt lgkmcnt(8)")
    for i in range(4): A(f"v_mul_f32 v{ST+2*i}, v{ST+2*i}, v{ST+1+2*i}")
    for n in range(4):
        for hw in range(2): A(f"v_lshlrev_b32 v{DF+2*hw}, 16, v{DP+2*n+hw}\nv_and_b32 v{DF+1+2*hw}, 0xffff0000, v{DP+2*n+hw}")
        A(f"s_waitcnt lgkmcnt({12-4*n})")
        for i in range(4):
            r = XB + (n * 4 + i) * 2; a = ACCY + (n * 4 + i) * 4; t = TT + 4 * (i & 1)
            for hw in range(2): A(f"v_lshlrev_b32 v{t+2*hw}, 16, v{r+hw}\nv_and_b32 v{t+2*hw+1}, 0xffff0000, v{r+hw}")
            for hw in range(2): A(pk('fma', t+2*hw, t+2*hw, ST+2*i, ST+2*i, sel='nhl', neg=[0,0,1]))
            for hw in range(2): A(pk('fma', a+2*hw, t+2*hw, DF+2*hw, a+2*hw))
    stamp(5, 2, 4, 26, 0)
    A("s_nop 1\ns_branch L3_back")
    A("L3_typeB:")
    A("s_barrier")
    stamp(1, 2, 64, 26, 0)
    for t, x in reads('o', 0, 0, 0): q.issue(t, x)
    A(f"s_mov_b32 s24, {NBS}")
    A(".p2align 4\nL3_oloop:")
    q.forget()
    for s in range(4):
        half('o', 0, reads('o', s, 1, 1), False)
        A("s_sub_u32 s24, s24, 1\ns_cmp_eq_u32 s24, 0\ns_cbranch_scc1 L3_otail")
        half('o', 1, reads('o', (s+1) & 3, 0, 0), True)
    A("s_branch L3_oloop")
    A("L3_otail:")
    A("s_waitcnt lgkmcnt(0)"); q.all_done()
    A("s_cmp_lg_u32 s27, 0\ns_cbranch_scc1 L3_nox")
    for n in range(4):
        for i in range(4): A(f"ds_read_b64 v[{XR+(n*4+i)*2}:{XR+(n*4+i)*2+1}], v{XA+n} offset:{4096*i}")
        if n == 2: A("s_waitcnt lgkmcnt(8)")
    A("L3_nox:")
    half('o', 1, [], False)
    stamp(2, 2, 4, 26, 0)
    A("v_lshlrev_b32 v5, 4, v2\nv_mov_b32 v9, 0")
    A("s_cmp_eq_u32 s27, 0\ns_cbranch_scc1 L3_finish")
    for k in range(16):
        if k % 4 == 0 and k: A("s_add_u32 s70, s70, 4096")
        A(f"buffer_store_dwordx4 v[{ACCO+4*k}:{ACCO+4*k+3}], v5, s[8:11], s70 offen offset:{1024*(k%4)} sc1")
    A("v_mov_b32 v3, 1\ns_waitcnt vmcnt(0)\ns_mov_b64 exec, 1")
    A("buffer_store_dword v3, v9, s[8:11], s71 offen sc1\ns_mov_b64 exec, -1")
    stamp(3, 2, 4, 26, 0)
    A("s_branch L3_end")
    A("L3_finish:")
    srd(16, KOUT, 8 * MB)
    A(f"v_add_u32 v5, s72, v5\nv_mov_b32 v28, {fh(-LOG2E)}\ns_waitcnt lgkmcnt(0)\ns_barrier")
    for k in range(8): A(f"ds_read_b128 v[{32+4*k}:{35+4*k}], v5 offset:{1024*k}")
    for n in range(4):
        for i in range(4):
            k = n * 4 + i
            o = ACCO + 4*k; y = ACCY + 4*k; p = 32 + 4*k; r = XR + 2*k
            if k < 8: A(f"ds_read_b128 v[{64+4*k}:{67+4*k}], v5 offset:{1024*(k+8)}\ns_waitcnt lgkmcnt(8)")
            else: A(f"s_waitcnt lgkmcnt({15-k})")
            for e in (0, 2): A(pk('add', o+e, o+e, p+e))
            for e in (0, 2): A(pk('mul', p+e, o+e, 28, sel='nl'))
            for e in range(4): A(f"v_exp_f32 v{p+e}, v{p+e}")
            for e in (0, 2): A(pk('mul', o+e, o+e, y+e))
            for e in (0, 2): A(pk('add', p+e, p+e, '1.0', sel='nl'))
            for e in range(4): A(f"v_rcp_f32 v{p+e}, v{p+e}")
            for hw in range(2): A(f"v_lshlrev_b32 v{y+2*hw}, 16, v{r+hw}\nv_and_b32 v{y+2*hw+1}, 0xffff0000, v{r+hw}")
            for e in (0, 2): A(pk('fma', y+e, o+e, p+e, y+e))
            A(f"s_mov_b32 s3, {65536*i}")
            A(f"buffer_store_dwordx4 v[{y}:{y+3}], v27, s[16:19], s3 offen offset:{64*n}{OSTF}")
    stamp(3, 2, 4, 26, 0)
    A("s_branch L3_end")
    A("L3_loader:")
    A("s_sub_u32 s26, s26, 4")
    A("s_lshl_b32 s64, s26, 12\nv_lshlrev_b32 v4, 4, v2\nv_add_u32 v3, s64, v4\nv_mov_b32 v22, 0")
    A("v_lshrrev_b32 v5, 4, v2")
    for j in range(4):
        A(f"v_or_b32 v6, {((j>>1)&1)<<2}, v5\nv_bfe_u32 v7, v2, 1, 3\nv_xor_b32 v7, v7, v6\nv_lshlrev_b32 v7, 5, v7")
        A("v_and_b32 v8, 1, v2\nv_lshl_add_u32 v7, v8, 4, v7")
        A(f"s_lshl_b32 s3, s26, 4\ns_add_u32 s3, s3, {4*j}\nv_add_u32 v9, s3, v5\nv_lshl_add_u32 v{14+j}, v9, 11, v7")
        if j: A(f"v_subrev_u32 v{14+j}, {1024*j}, v{14+j}")
    A("v_and_b32 v6, 15, v2")
    for j in range(4):
        A(f"v_add_u32 v7, {4*j}, v5\nv_xor_b32 v8, v6, v7\nv_lshlrev_b32 v8, 4, v8\nv_lshl_add_u32 v{24+j}, v7, 11, v8")
        if j: A(f"v_subrev_u32 v{24+j}, {1024*j}, v{24+j}")
    A("v_lshrrev_b32 v5, 3, v2\nv_and_b32 v6, 7, v2\nv_xor_b32 v6, v6, v5\nv_lshlrev_b32 v6, 4, v6")
    for j in range(4):
        A(f"s_lshl_b32 s3, s26, 5\ns_add_u32 s3, s3, {8*j}\nv_add_u32 v9, s3, v5\nv_lshl_add_u32 v{10+j}, v9, 11, v6")
        if j: A(f"v_subrev_u32 v{10+j}, {1024*j}, v{10+j}")
    A("s_waitcnt lgkmcnt(0)")
    srd(8, KWS, WS_SIZE); srd(16, KX, 4 * MB)
    A("s_mov_b32 s15, 0x20000\ns_mov_b32 s69, 0")
    getid()
    A(f"s_lshl_b32 s66, s30, 14\ns_add_u32 s66, s66, {WS_ACT}")
    WD = f"s_mov_b32 s12, s{KWD}\ns_and_b32 s13, s{KWD+1}, 0xffff\ns_mov_b32 s14, {3584*2048}\ns_lshl_b32 s67, s31, 8\ns_mov_b32 s68, 131072\n" + '\n'.join(f"v_mov_b32 v{10+j}, v{14+j}" for j in range(4))
    A("s_cmp_lg_u32 s27, 0\ns_cbranch_scc1 L3_lB")
    A(f"s_mov_b32 s12, s{KCRE}\ns_and_b32 s13, s{KCRE+1}, 0xffff\ns_mov_b32 s14, {2*MB}\ns_lshl_b32 s67, s31, 18\ns_mov_b32 s68, 128")
    A(f"s_mov_b32 s65, 0\ns_mov_b32 s24, {NA-4}\ns_branch L3_lgo")
    A("L3_lB:")
    A(WD)
    A(f"s_add_u32 s67, s67, {XO*131072}\ns_add_u32 s66, s66, {NA*262144}\ns_mov_b32 s65, 1000\ns_mov_b32 s24, {NBS-4}")
    A("L3_lgo:")
    def trace():
        if P['dbg'] != 6: return
        A("s_memrealtime s[92:93]\ns_waitcnt lgkmcnt(0)\ns_mov_b32 m0, s94\ns_nop 0\nv_writelane_b32 v40, s92, m0\ns_add_u32 s94, s94, 1")
    def trace_dump():
        if P['dbg'] != 6: return
        A(f"s_lshl_b32 s3, s6, 8\ns_add_u32 s3, s3, {WS_STAMP + 262144}\nv_lshlrev_b32 v41, 2, v2\nbuffer_store_dword v40, v41, s[8:11], s3 offen")
    if P['dbg'] == 6: A("s_mov_b32 s94, 0\nv_mov_b32 v40, 0")
    trace()
    def issue():
        A("s_add_u32 m0, s64, s69")
        for j in range(4): A(f"buffer_load_dwordx4 v3, s[8:11], s66 offen offset:{1024*j} lds")
        A("s_add_u32 m0, m0, 16384\ns_add_u32 s66, s66, 262144")
        for j in range(4): A(f"buffer_load_dwordx4 v{10+j}, s[12:15], s67 offen offset:{1024*j} lds")
        A("s_add_u32 s67, s67, s68\ns_add_u32 s69, s69, 32768\ns_and_b32 s69, s69, 0x1ffff\ns_add_u32 s65, s65, 1")
    issue(); issue()
    exch(26)
    A("s_lshl_b32 s73, s30, 18\ns_lshl_b32 s3, s26, 16\ns_add_u32 s73, s73, s3\ns_lshl_b32 s3, s31, 8\ns_add_u32 s73, s73, s3")
    A(f"s_lshl_b32 s74, s26, 13\ns_add_u32 s74, s74, {XL}")
    A("s_waitcnt vmcnt(8)\ns_barrier")
    trace()
    issue(); issue()
    A("s_cmp_lg_u32 s27, 0\ns_cbranch_scc1 L3_lloop")
    for hh in range(2):
        A(f"s_add_u32 m0, s74, {4096*hh}")
        for j in range(4): A(f"buffer_load_dwordx4 v{24+j}, s[16:19], s73 offen offset:{1024*j} lds")
        A("s_add_u32 s73, s73, 32768")
    for r in range(3):
        A("s_waitcnt vmcnt(24)\ns_barrier"); trace(); issue()
    A("s_sub_u32 s24, s24, 3")
    A(".p2align 4\nL3_lloop:")
    A("s_cmp_eq_u32 s65, 16\ns_cbranch_scc0 L3_ln1")
    A(f"s_mov_b32 s12, s{KCIM}\ns_and_b32 s13, s{KCIM+1}, 0xffff\ns_lshl_b32 s67, s31, 18")
    A("L3_ln1:")
    A("s_cmp_eq_u32 s65, 32\ns_cbranch_scc0 L3_ln2")
    A(WD)
    A("L3_ln2:")
    A("s_waitcnt vmcnt(16)\ns_barrier")
    trace()
    issue()
    A("s_sub_u32 s24, s24, 1\ns_cmp_lg_u32 s24, 0\ns_cbranch_scc1 L3_lloop")
    A("s_waitcnt vmcnt(16)\ns_barrier")
    trace()
    A("s_cmp_eq_u32 s27, 0\ns_cbranch_scc1 L3_ltA")
    A("s_waitcnt vmcnt(8)\ns_barrier"); trace(); A("s_waitcnt vmcnt(0)\ns_barrier"); trace(); trace_dump(); A("s_branch L3_end")
    A("L3_ltA:")
    def obuf_dma():
        for k in range(16):
            if k % 4 == 0:
                A(f"s_add_u32 m0, s72, {1024*k}")
                if k: A("s_add_u32 s70, s70, 4096")
            A(f"buffer_load_dwordx4 v4, s[8:11], s70 offen offset:{1024*(k%4)} sc1 lds")
    A("buffer_load_dword v23, v22, s[8:11], s71 offen sc1")
    A("s_waitcnt vmcnt(9)\ns_barrier"); trace(); A("s_waitcnt vmcnt(0)")
    A("v_readfirstlane_b32 s3, v23\ns_cmp_eq_u32 s3, 1\ns_cbranch_scc0 L3_llate")
    obuf_dma()
    A("s_barrier\ns_branch L3_ldone")
    A("L3_llate:")
    A("s_barrier\ns_mov_b32 s5, 0")
    A("L3_poll:")
    A("buffer_load_dword v23, v22, s[8:11], s71 offen sc1\ns_waitcnt vmcnt(0)\nv_readfirstlane_b32 s3, v23\ns_cmp_eq_u32 s3, 1\ns_cbranch_scc1 L3_got\ns_sleep 1\ns_add_u32 s5, s5, 1\ns_cmp_lt_u32 s5, 0x40000\ns_cbranch_scc1 L3_poll")
    A("L3_got:")
    obuf_dma()
    A("L3_ldone:")
    trace()
    A("s_waitcnt vmcnt(0)"); trace(); A("s_barrier"); trace(); trace_dump()
    A("L3_end:\ns_endpgm")

A.raw(f"; @launch kernel=k1_g1_kernel grid=(256,1,1) block=(512,1,1) lds={G1_LDS}")
A.raw("; @launch kernel=k2_g2_kernel grid=(256,1,1) block=(512,1,1) lds=163840")
A.raw('.amdgcn_target "amdgcn-amd-amdhsa--gfx950"')
A.raw('.text')
assert P['pz'] <= 6
g1(); g2()
A.raw('.section .rodata,"a"')
kdesc('k1_g1_kernel', 256, 100)
kdesc('k2_g2_kernel', 256, 100)
sys.stdout.write(A.text())
```

```python
import sys, math, struct
from asmlib import Asm

P = dict(stamp=0, X=13, dbg=0, pf2=1, pf3=1, pfa=1, pfb=2, slp=6, npk=2, pz=6, tk1=1, tk2=1, pfc=1, st3=1, xfirst=0, wpre=4)
for a in sys.argv[1:]:
    k, v = a.split('='); assert k in P, k; P[k] = int(v)
STAMP = P['stamp']; XO = P['X']
OSTF = ['', ' sc1', ' nt'][P['st3']]

def f2u(x): return struct.unpack('<I', struct.pack('<f', x))[0]
def fh(x): return '0x%08x' % f2u(x)

MB = 1 << 20
WS_XN = 0
WS_STATS = 4 * MB
WS_TBUF = 4 * MB + 65536
WS_FLAGS = 4 * MB + 196608
WS_CNT2 = 4 * MB + 262144
WS_ACT = 8 * MB
WS_OBUF = 32 * MB
WS_STAMP = 48 * MB
WS_SIZE = 64 * MB
LOG2E = 1.4426950408889634
KX, KLRE, KLIM, KBRE, KBIM, KCRE, KCIM, KLDT, KDSK, KWG, KWU, KWD, KOUT, KDBG, KWS = 32, 34, 36, 38, 40, 42, 44, 46, 48, 52, 54, 56, 58, 60, 62

A = Asm()

def kstart(name):
    A.raw(f'.globl {name}\n.p2align 8\n.type {name},@function\n{name}:')
    A.reset()

def kdesc(name, vgpr, sgpr):
    A.raw(f'''.p2align 6
.amdhsa_kernel {name}
  .amdhsa_next_free_vgpr {vgpr}
  .amdhsa_next_free_sgpr {sgpr}
  .amdhsa_accum_offset {(vgpr+3)//4*4}
  .amdhsa_group_segment_fixed_size 0
  .amdhsa_kernarg_size 128
  .amdhsa_user_sgpr_count 2
  .amdhsa_user_sgpr_kernarg_segment_ptr 1
  .amdhsa_system_sgpr_workgroup_id_x 1
.end_amdhsa_kernel''')

def srd(d, b, size):
    A(f"s_mov_b32 s{d}, s{b}\ns_and_b32 s{d+1}, s{b+1}, 0xffff\ns_mov_b32 s{d+2}, {size}\ns_mov_b32 s{d+3}, 0x20000")

def stamp(slot, kid, tmpv, cond=None, wave=0, dyn=None):
    if not STAMP: return
    sp = 88
    lab = f"Lst_{kid}_{slot}_{len(A.lines)}"
    if cond is not None: A(f"s_cmp_lg_u32 s{cond}, {wave}\ns_cbranch_scc1 {lab}")
    A(f"s_memrealtime s[{sp}:{sp+1}]\ns_memtime s[{sp+2}:{sp+3}]\ns_waitcnt lgkmcnt(0)")
    A(f"s_lshl_b32 s{sp+4}, s2, 7\ns_add_u32 s{sp+4}, s{sp+4}, {WS_STAMP + kid*256*128 + slot*16}")
    if dyn is not None: A(f"s_lshl_b32 s{sp+5}, s{dyn}, 4\ns_sub_u32 s{sp+4}, s{sp+4}, s{sp+5}")
    A(f"v_mov_b32 v{tmpv}, s{sp}\nv_mov_b32 v{tmpv+1}, s{sp+1}\nv_mov_b32 v{tmpv+2}, s{sp+2}\nv_mov_b32 v{tmpv+3}, s{sp+3}")
    A(f"s_mov_b64 exec, 1\nbuffer_store_dwordx4 v[{tmpv}:{tmpv+3}], off, s[8:11], s{sp+4}\ns_mov_b64 exec, -1")
    A(f"{lab}:")

class LQ:
    def __init__(self): self.n = 0; self.tag = {}; self.done = 0
    def issue(self, tag, text):
        A(text); self.n += 1; self.tag[tag] = self.n
    def wait(self, *tags):
        need = max(self.tag[t] for t in tags)
        if need <= self.done: return
        c = self.n - need
        assert c <= 15
        A(f"s_waitcnt lgkmcnt({c})"); self.done = need
    def all_done(self): self.done = self.n
    def forget(self): self.done = 0

NPK = [0]
def pk(op, d, *srcs, sel=None, neg=None):
    n = len(srcs); sel = sel or 'n' * n; neg = neg or [0] * n
    t = [f"v[{x}:{x+1}]" if isinstance(x, int) else x for x in srcs]
    for x in srcs:
        if isinstance(x, int): assert x % 2 == 0, x
    assert d % 2 == 0
    lo = [{'n': 0, 'l': 0, 'h': 1, 'x': 1}[c] for c in sel]; hi = [{'n': 1, 'l': 0, 'h': 1, 'x': 0}[c] for c in sel]
    nl = [1 if c in (1, 'l') else 0 for c in neg]; nh = [1 if c in (1, 'h') else 0 for c in neg]
    if NPK[0]:
        out = []
        halves = [(0, lo, nl), (1, hi, nh)]
        srcs_hi = [x + hi[k] for k, x in enumerate(srcs) if isinstance(x, int)]
        srcs_lo = [x + lo[k] for k, x in enumerate(srcs) if isinstance(x, int)]
        if d in srcs_hi:
            assert d + 1 not in srcs_lo, "alias"
            halves = halves[::-1]
        for hf, sl, ng in halves:
            ops = [(('-' if ng[k] else '') + f"v{x+sl[k]}") if isinstance(x, int) else x for k, x in enumerate(srcs)]
            dd = f"v{d+hf}"
            if op == 'fma' and ops[2] == dd and not any(ng): out.append(f"v_fmac_f32 {dd}, {ops[0]}, {ops[1]}")
            elif op == 'fma': out.append(f"v_fma_f32 {dd}, " + ', '.join(ops))
            elif op == 'add' and ng[1] and not ng[0]: out.append(f"v_sub_f32 {dd}, {ops[0]}, {ops[1][1:]}")
            else:
                if not ops[1].startswith('v'): ops = ops[::-1]
                assert not any(ng)
                out.append(f"v_{op}_f32 {dd}, " + ', '.join(ops))
        return '\n'.join(out)
    f = lambda v: '[' + ','.join(map(str, v)) + ']'
    m = ''
    if any(lo): m += f" op_sel:{f(lo)}"
    if not all(hi): m += f" op_sel_hi:{f(hi)}"
    if any(nl): m += f" neg_lo:{f(nl)}"
    if any(nh): m += f" neg_hi:{f(nh)}"
    return f"v_pk_{op}_f32 v[{d}:{d+1}], " + ', '.join(t) + m

def cma2(args):
    l = [[pk('fma', t, a, b, c, sel='lnn'), pk('fma', d, a, b, t, sel='hxn', neg=['l', 0, 0])] for d, a, b, c, t in args]
    for k in range(2):
        for x in l: A(x[k])

def ticket_issue(srdn, shift, base):
    A("s_getreg_b32 s3, hwreg(HW_REG_XCC_ID)\ns_and_b32 s3, s3, 7")
    A(f"s_lshl_b32 s5, s3, {shift}\ns_add_u32 s5, s5, {base}\nv_mov_b32 v20, 1\ns_mov_b64 exec, 1")
    A(f"buffer_atomic_add v20, off, s[{srdn}:{srdn+3}], s5 sc0 sc1\ns_mov_b64 exec, -1")
def ticket_finish(srdn, shift, base, young, lab, ldsaddr):
    A(f"s_mov_b32 s4, 0\ns_waitcnt vmcnt({young})\n{lab}_chk:")
    A(f"v_readfirstlane_b32 s29, v20\ns_cmp_lt_u32 s29, 32\ns_cbranch_scc1 {lab}_ok")
    A(f"s_add_u32 s4, s4, 1\ns_cmp_ge_u32 s4, 8\ns_cbranch_scc1 {lab}_ok")
    A(f"s_add_u32 s3, s3, 1\ns_and_b32 s3, s3, 7\ns_lshl_b32 s5, s3, {shift}\ns_add_u32 s5, s5, {base}\nv_mov_b32 v20, 1\ns_mov_b64 exec, 1")
    A(f"buffer_atomic_add v20, off, s[{srdn}:{srdn+3}], s5 sc0 sc1\ns_mov_b64 exec, -1\ns_waitcnt vmcnt(0)\ns_branch {lab}_chk")
    A(f"{lab}_ok:\ns_lshl_b32 s29, s29, 3\ns_add_u32 s29, s29, s3\ns_and_b32 s29, s29, 255")
    A(f"v_mov_b32 v20, s29\nv_mov_b32 v21, {ldsaddr}\nds_write_b32 v21, v20\ns_waitcnt lgkmcnt(0)")
def ticket_read(ldsaddr, bar=True):
    if bar: A("s_barrier")
    A(f"v_mov_b32 v21, {ldsaddr}\nds_read_b32 v20, v21\ns_waitcnt lgkmcnt(0)\nv_readfirstlane_b32 s6, v20\ns_and_b32 s6, s6, 255")

SLOT1 = 34816
OFF_WG, OFF_WU, OFF_B = 16384, 23552, 30720
G1_SCR = 4 * SLOT1
G1_LDS = G1_SCR + 1024 + 512 + 64
TKL = G1_SCR + 1536
ACC = 96; AFR = 16; BFR = 48
def acc(b, i): return ACC + (b * 4 + i) * 4
PB = 224
def pr(b, k): return PB + 16 * b + k

def gelu_pair(bg, bu, T):
    K = T + 20
    A("s_lshr_b32 s66, s64, 2\ns_lshl_b32 s66, s66, 18\ns_and_b32 s3, s64, 3\ns_lshl_b32 s3, s3, 12\ns_add_u32 s66, s66, s3\ns_add_u32 s66, s66, s65\ns_add_u32 s64, s64, 1")
    for h in range(2):
        prs = [(acc(bg, 2*h + ii) + 2*k, acc(bu, 2*h + ii) + 2*k) for ii in range(2) for k in range(2)]
        for n, (g, u) in enumerate(prs): A(pk('mul', T+2*n, g, g))
        for n, (g, u) in enumerate(prs): A(pk('fma', T+2*n, T+2*n, K, K, sel='nlh'))
        for n, (g, u) in enumerate(prs): A(pk('mul', T+2*n, T+2*n, g))
        for n, (g, u) in enumerate(prs):
            A(f"v_exp_f32 v{T+2*n}, v{T+2*n}\nv_exp_f32 v{T+2*n+1}, v{T+2*n+1}")
            A(pk('mul', T+8+2*n, g, u))
        for n in range(4): A(pk('add', T+2*n, T+2*n, '1.0', sel='nl'))
        for e in range(8): A(f"v_rcp_f32 v{T+e}, v{T+e}")
        for n in range(4): A(pk('mul', T+8+2*n, T+8+2*n, T+2*n))
        o = acc(bg, 2 * h)
        for n in range(4): A(f"v_cvt_pk_bf16_f32 v{o+n}, v{T+8+2*n}, v{T+9+2*n}")
        A(f"buffer_store_dwordx4 v[{o}:{o+3}], v{10+h}, s[8:11], s66 offen sc1")

def g1_loop(kind):
    NBLK = 10 if kind == 0 else 8
    NBUF = 5 if kind == 0 else 8
    BAR = NBLK - 3
    ND = 4 if kind == 0 else 5
    q = LQ()
    def bfr(b): return BFR + (b % NBUF) * 4
    def rd_A(slot, par):
        return [(('A', par, i), f"ds_read_b128 v[{AFR+par*16+i*4}:{AFR+par*16+i*4+3}], v{4+(slot>>1)} offset:{(slot&1)*SLOT1 + i*1024}") for i in range(4)]
    def rd_B(slot, b):
        f = bfr(b); so = (slot & 1) * SLOT1
        if kind == 0 or b < 4:
            j = (b >> 1) + (0 if kind == 0 else 5)
            off = so + (b & 1) * 7168 + 32 * j
            return [(('B', b, 0), f"ds_read_b64_tr_b16 v[{f}:{f+1}], v{6+(slot>>1)} offset:{off}"),
                    (('B', b), f"ds_read_b64_tr_b16 v[{f+2}:{f+3}], v{6+(slot>>1)} offset:{off+1792}")]
        idx = ((b - 4) & 1) * 2 + ((b - 4) >> 1)
        return [(('B', b), f"ds_read_b128 v[{f}:{f+3}], v{8+(slot>>1)} offset:{so + idx*1024}")]
    def dma(slot, part='ab'):
        base = slot * SLOT1
        if kind == 0:
            return [[f"s_add_u32 m0, s22, {base + OFF_WG}", "buffer_load_dwordx4 v2, s[12:15], s20 offen lds"],
                    ["s_mov_b64 exec, s[30:31]", "buffer_load_dwordx4 v3, s[12:15], s20 offen offset:1024 lds", "s_mov_b64 exec, -1"],
                    [f"s_add_u32 m0, s22, {base + OFF_WU}", "buffer_load_dwordx4 v2, s[16:19], s20 offen lds"],
                    ["s_mov_b64 exec, s[30:31]", "buffer_load_dwordx4 v3, s[16:19], s20 offen offset:1024 lds", "s_mov_b64 exec, -1", "s_add_u32 s20, s20, 229376"]]
        la = [[f"s_add_u32 m0, s22, {base}", "buffer_load_dwordx4 v2, s[8:11], s20 offen sc1 lds"],
              ["buffer_load_dwordx4 v2, s[8:11], s20 offen offset:1024 sc1 lds"],
              ["buffer_load_dwordx4 v2, s[8:11], s20 offen offset:2048 sc1 lds"],
              ["buffer_load_dwordx4 v2, s[8:11], s20 offen offset:3072 sc1 lds", "s_add_u32 s20, s20, 131072"]]
        lb = [[f"s_add_u32 m0, s23, {base + OFF_B}", "buffer_load_dwordx4 v3, s[12:15], s21 offen lds", "s_add_u32 s21, s21, 64"]]
        return (la if 'a' in part else []) + (lb if 'b' in part else [])
    def first_reads():
        for t, x in rd_A(0, 0) + rd_B(0, 0) + rd_B(0, 1) + rd_B(0, 2) + rd_B(0, 3): q.issue(t, x)
    def stage(slot, do_dma, vm, last=False, bar=True, fill=None, nfill=0, post_bar=None, early=None, dslot=None, czero=False, epart='ab', dpart='ab'):
        par = slot & 1
        pend = dma(early, epart) if early is not None else []
        if dslot is None: dslot = slot
        for b in range(NBLK):
            rds = []
            if b + 4 < NBLK: rds = rd_B(slot, b + 4)
            if b == BAR and not last:
                if bar:
                    A(f"s_waitcnt vmcnt({vm}) lgkmcnt(0)"); q.all_done()
                    A("s_barrier")
                    if post_bar: A(post_bar)
                ns = (slot + 1) & 3
                rds = rd_A(ns, par ^ 1) + rd_B(ns, 0) + rd_B(ns, 1)
                assert not pend
                if do_dma: pend = dma(dslot, dpart)
            elif b > BAR and not last:
                rds = rd_B((slot + 1) & 3, b - BAR + 1)
            for i in range(4):
                if b == 0: q.wait(('A', par, i), ('B', b))
                else: q.wait(('B', b))
                ii = 3 - i if b & 1 else i
                a = acc(b, ii); fa = AFR + par * 16 + ii * 4; fb = bfr(b)
                A(f"v_mfma_f32_16x16x32_bf16 v[{a}:{a+3}], v[{fa}:{fa+3}], v[{fb}:{fb+3}], " + ("0" if czero else f"v[{a}:{a+3}]"))
                for _ in range((len(rds) + (3 - i)) // (4 - i)):
                    t, x = rds.pop(0); q.issue(t, x)
                for _ in range(nfill):
                    if fill: A(fill.pop(0))
                if pend and ((b > BAR and (i & 1)) or (b < BAR and i == 3)):
                    for x in pend.pop(0): A(x)
            if b == NBLK - 1:
                while pend:
                    for x in pend.pop(0): A(x)
    return first_reads, stage, q, ND, dma

def ssm_params():
    L = []
    def E(t): L.extend(t.split('\n'))
    for b in range(2):
        lr, li, ld = 80 + 3*b, 81 + 3*b, 82 + 3*b
        LR, LI = pr(b,0), pr(b,2)
        E(f"v_lshlrev_b32 v{lr}, 16, v{lr}\nv_lshlrev_b32 v{li}, 16, v{li}\nv_lshlrev_b32 v{ld}, 16, v{ld}")
        E(f"v_mul_f32 v{ld}, {fh(LOG2E)}, v{ld}\nv_exp_f32 v{ld}, v{ld}\nv_mul_f32 v14, v{lr}, v{lr}\nv_cvt_pk_bf16_f32 v{ld}, v{ld}, v{ld}\nv_and_b32 v{ld}, 0xffff0000, v{ld}")
        E(f"v_mul_f32 v10, v{ld}, v{lr}\nv_mul_f32 v10, {fh(LOG2E)}, v10\nv_exp_f32 v10, v10")
        E(f"v_mul_f32 v11, v{ld}, v{li}\nv_mul_f32 v11, {fh(1/(2*math.pi))}, v11\nv_rndne_f32 v12, v11\nv_sub_f32 v11, v11, v12")
        E(f"v_cos_f32 v12, v11\nv_sin_f32 v13, v11\nv_fmac_f32 v14, v{li}, v{li}\nv_rcp_f32 v11, v14")
        E(f"v_mul_f32 v{LR}, v10, v12\nv_mul_f32 v{LI}, v10, v13")
        E(f"v_add_f32 v10, -1.0, v{LR}\nv_add_f32 v11, v11, v11")
        E(f"v_mul_f32 v12, v10, v{lr}\nv_fmac_f32 v12, v{LI}, v{li}\nv_mul_f32 v{pr(b,12)}, v12, v11")
        E(f"v_mul_f32 v12, v{LI}, v{lr}\nv_fma_f32 v12, -v10, v{li}, v12\nv_mul_f32 v{pr(b,13)}, v12, v11")
        cur = (LR, LI)
        dsts = {2: (LR+1, LI+1), 16: (pr(b,4), pr(b,5)), 32: (pr(b,6), pr(b,7)), 64: (pr(b,8), pr(b,9)), 256: (pr(b,10), pr(b,11))}
        e = 1; tog = 0
        while e < 256:
            e *= 2
            d = dsts.get(e, (10 + 2*tog, 11 + 2*tog)); tog ^= 1
            E(f"v_mul_f32 v14, v{cur[1]}, v{cur[1]}\nv_mul_f32 v15, v{cur[0]}, v{cur[1]}")
            E(f"v_fma_f32 v{d[0]}, v{cur[0]}, v{cur[0]}, -v14\nv_add_f32 v{d[1]}, v15, v15")
            cur = d
        E("v_and_b32 v14, 32, v1\nv_cmp_ne_u32 vcc, 0, v14\nv_mov_b32 v14, 1.0\nv_mov_b32 v15, 0")
        E(f"v_cndmask_b32 v10, v14, v{pr(b,6)}, vcc\nv_cndmask_b32 v11, v15, v{pr(b,7)}, vcc")
        E("v_and_b32 v14, 16, v1\nv_cmp_ne_u32 vcc, 0, v14")
        E(f"v_mul_f32 v12, v10, v{pr(b,4)}\nv_fma_f32 v12, -v11, v{pr(b,5)}, v12\nv_mul_f32 v13, v10, v{pr(b,5)}\nv_fmac_f32 v13, v11, v{pr(b,4)}")
        E(f"v_cndmask_b32 v{pr(b,14)}, v10, v12, vcc\nv_cndmask_b32 v{pr(b,15)}, v11, v13, vcc")
    return L

def ln_phase(kind):
    X = 116; R = 132
    for d in range(8): A(f"v_lshlrev_b32 v{X+2*d}, 16, v{108+d}\nv_and_b32 v{X+1+2*d}, 0xffff0000, v{108+d}")
    A(pk('add', R, X, X+2)); A(pk('add', R+2, X+4, X+6))
    A(pk('add', R, R, X+8)); A(pk('add', R+2, R+2, X+10)); A(pk('add', R, R, X+12)); A(pk('add', R+2, R+2, X+14))
    A(pk('add', R, R, R+2)); A(f"v_add_f32 v{R}, v{R}, v{R+1}")
    def red8(v):
        A(f"v_add_f32_dpp v{v}, v{v}, v{v} quad_perm:[1,0,3,2] row_mask:0xf bank_mask:0xf")
        A(f"v_add_f32_dpp v{v}, v{v}, v{v} quad_perm:[2,3,0,1] row_mask:0xf bank_mask:0xf")
        A(f"v_add_f32_dpp v{v}, v{v}, v{v} row_half_mirror row_mask:0xf bank_mask:0xf")
    red8(R)
    A(f"v_mul_f32 v{R+4}, {fh(1/128)}, v{R}")
    for d in range(8): A(pk('add', R+8+2*d, X+2*d, R+4, sel='nl', neg=[0, 1]))
    A(pk('mul', R, R+8, R+8)); A(pk('mul', R+2, R+10, R+10))
    for d in range(2, 8): A(pk('fma', R+2*(d&1), R+8+2*d, R+8+2*d, R+2*(d&1)))
    A(pk('add', R, R, R+2)); A(f"v_add_f32 v{R+5}, v{R}, v{R+1}")
    red8(R+5)
    A(f"ds_write_b64 v107, v[{R+4}:{R+5}]\ns_waitcnt lgkmcnt(0)\ns_barrier")
    for k in range(4): A(f"ds_read_b128 v[{R+8+4*k}:{R+11+4*k}], v106 offset:{16*k}")
    A("s_waitcnt lgkmcnt(0)")
    Q = R + 8
    A(pk('add', R, Q, Q+2)); A(pk('add', R+2, Q+4, Q+6)); A(pk('add', R, R, Q+8)); A(pk('add', R+2, R+2, Q+10)); A(pk('add', R, R, Q+12)); A(pk('add', R+2, R+2, Q+14))
    A(pk('add', R, R, R+2))
    A(f"v_mul_f32 v{R}, {fh(0.125)}, v{R}\nv_mul_f32 v{R+1}, {fh(1/1024)}, v{R+1}")
    for k in range(8): A(f"v_sub_f32 v{Q+2*k}, v{Q+2*k}, v{R}")
    A(f"v_mul_f32 v{R+2}, v{Q}, v{Q}\nv_mul_f32 v{R+3}, v{Q+2}, v{Q+2}")
    for k in range(2, 8): A(f"v_fmac_f32 v{R+2+(k&1)}, v{Q+2*k}, v{Q+2*k}")
    A(f"v_add_f32 v{R+2}, v{R+2}, v{R+3}\nv_fmac_f32 v{R+1}, {fh(0.125)}, v{R+2}")
    A(f"v_cvt_pk_bf16_f32 v{R+2}, v{R}, v{R+1}\nv_lshlrev_b32 v{R}, 16, v{R+2}\nv_and_b32 v{R+1}, 0xffff0000, v{R+2}")
    A(f"v_add_f32 v{R+1}, {fh(1e-5)}, v{R+1}\nv_cvt_pk_bf16_f32 v{R+1}, v{R+1}, v{R+1}\nv_and_b32 v{R+1}, 0xffff0000, v{R+1}")
    A(f"v_sqrt_f32 v{R+1}, v{R+1}")
    for d in range(8): A(pk('add', X+2*d, X+2*d, R, sel='nl', neg=[0, 1]))
    A(f"v_cvt_pk_bf16_f32 v{R+1}, v{R+1}, v{R+1}\nv_and_b32 v{R+1}, 0xffff0000, v{R+1}\nv_rcp_f32 v{R+1}, v{R+1}")
    for d in range(8): A(f"v_cvt_pk_bf16_f32 v{108+d}, v{X+2*d}, v{X+2*d+1}")
    for d in range(8): A(f"v_lshlrev_b32 v{X+2*d}, 16, v{108+d}\nv_and_b32 v{X+1+2*d}, 0xffff0000, v{108+d}")
    for d in range(8): A(pk('mul', X+2*d, X+2*d, R, sel='nh'))
    for d in range(8): A(f"v_cvt_pk_bf16_f32 v{108+d}, v{X+2*d}, v{X+2*d+1}")
    A(f"s_mov_b32 s3, {WS_XN}\ns_mov_b32 s4, {WS_XN + 262144}")
    A("buffer_store_dwordx4 v[108:111], v102, s[8:11], s3 offen sc1\nbuffer_store_dwordx4 v[112:115], v102, s[8:11], s4 offen sc1")
    if kind == 0:
        A("s_cmp_lg_u32 s26, 3\ns_cbranch_scc1 L2_lni2")
        A(f"s_lshl_b32 s3, s2, 2\ns_add_u32 s3, s3, {WS_CNT2}\nv_mov_b32 v107, 0\ns_mov_b64 exec, 1\nbuffer_store_dword v107, off, s[8:11], s3\ns_mov_b64 exec, -1")
        A("L2_lni2:\ns_cmp_lg_u32 s26, 2\ns_cbranch_scc1 L2_lni3")
        A(f"v_lshlrev_b32 v100, 3, v100\ns_mov_b32 s3, {WS_STATS}\ns_mov_b32 exec_lo, 0x01010101\ns_mov_b32 exec_hi, 0x01010101")
        A(f"buffer_store_dwordx2 v[{R}:{R+1}], v100, s[8:11], s3 offen\ns_mov_b64 exec, -1")
        A("L2_lni3:")

def g1():
    kstart('k1_g1_kernel')
    A("s_cmp_ge_u32 s2, 256\ns_cbranch_scc1 L2_end")
    A("s_load_dwordx16 s[32:47], s[0:1], 0\ns_load_dwordx16 s[48:63], s[0:1], 64")
    A("v_and_b32 v1, 63, v0\nv_lshrrev_b32 v10, 6, v0\nv_readfirstlane_b32 s25, v10")
    A("s_lshr_b32 s7, s2, 5\ns_mov_b32 s30, -1\ns_mov_b32 s31, 0xffff")
    A("v_lshrrev_b32 v103, 3, v1\ns_and_b32 s3, s2, 1\ns_lshl_b32 s3, s3, 3\nv_add_u32 v103, s3, v103\nv_and_b32 v104, 7, v1")
    A("s_bfe_u32 s4, s2, 0x20001\ns_bfe_u32 s5, s2, 0x20003\ns_lshl_b32 s3, s7, 8\ns_lshl_b32 s29, s5, 6\ns_add_u32 s3, s3, s29\ns_lshl_b32 s29, s4, 2\ns_add_u32 s3, s3, s29")
    A("v_lshrrev_b32 v100, 2, v103\nv_lshlrev_b32 v100, 4, v100\nv_and_b32 v101, 3, v103\nv_add3_u32 v100, v100, v101, s3")
    A("s_lshl_b32 s3, s25, 8\nv_lshlrev_b32 v101, 11, v100\nv_lshl_add_u32 v101, v104, 4, v101\nv_add_u32 v101, s3, v101")
    A("s_lshl_b32 s20, s7, 14\ns_lshl_b32 s5, s5, 12\ns_add_u32 s20, s20, s5\ns_lshl_b32 s4, s4, 10\ns_add_u32 s20, s20, s4\ns_lshl_b32 s4, s25, 19\ns_add_u32 s20, s20, s4")
    A("s_and_b32 s26, s25, 3")
    A("s_waitcnt lgkmcnt(0)")
    srd(80, KX, 4 * MB); srd(96, KDBG, 256)
    XL = "buffer_load_dwordx4 v[108:111], v101, s[80:83], 0 offen\nbuffer_load_dwordx4 v[112:115], v101, s[80:83], 0 offen offset:128"
    A(XL)
    srd(8, KWS, WS_SIZE)
    stamp(0, 1, 16, 25, 0)
    A("v_lshrrev_b32 v102, 2, v104\nv_lshlrev_b32 v102, 17, v102\nv_and_b32 v105, 3, v104\nv_lshl_add_u32 v102, v105, 8, v102\nv_lshl_add_u32 v102, v103, 4, v102\nv_add_u32 v102, s20, v102")
    A(f"v_lshrrev_b32 v106, 3, v1\nv_lshlrev_b32 v106, 6, v106\nv_add_u32 v106, {G1_SCR+1024}, v106\ns_lshl_b32 s3, s25, 3\nv_add_u32 v107, s3, v106")
    A(f"s_lshl_b32 s3, s26, 12\nv_lshlrev_b32 v4, 4, v1\nv_add_u32 v4, s3, v4\nv_add_u32 v5, {2*SLOT1}, v4")
    A("v_lshrrev_b32 v10, 4, v1\nv_bfe_u32 v11, v1, 2, 2\nv_and_b32 v12, 3, v1")
    A("v_and_b32 v13, 1, v10\nv_lshl_or_b32 v13, v13, 2, v11\nv_lshrrev_b32 v14, 1, v10\nv_lshl_or_b32 v13, v14, 4, v13")
    A(f"v_mul_u32_u24 v13, 224, v13\nv_lshl_add_u32 v13, v12, 3, v13\nv_add_u32 v6, {OFF_WG}, v13\nv_add_u32 v7, {2*SLOT1}, v6")
    A("v_and_b32 v13, 15, v1\nv_lshrrev_b32 v14, 2, v13\nv_sub_u32 v14, 0, v14\nv_and_b32 v14, 3, v14\nv_xor_b32 v14, v14, v10")
    A(f"v_lshlrev_b32 v13, 6, v13\nv_lshl_add_u32 v13, v14, 4, v13\nv_add_u32 v8, {OFF_B}, v13\nv_add_u32 v9, {2*SLOT1}, v8")
    A("v_min_u32 v94, 27, v1\nv_lshlrev_b32 v94, 7, v94\nv_and_b32 v95, 15, v1\nv_lshlrev_b32 v95, 7, v95")
    A("s_cmp_ge_u32 s25, 4\ns_cbranch_scc1 L2_kind1")
    g1_body(0)
    A("s_branch L2_end")
    A("L2_kind1:")
    g1_body(1)
    A("L2_end:\ns_endpgm")

def g1_body(kind):
    first_reads, stage, q, ND, dma = g1_loop(kind)
    def E(groups):
        for g in groups:
            for x in g: A(x)
    def touch(): A("buffer_load_dword v91, v90, s[84:87], s94 offen\ns_add_u32 s94, s94, s95")
    PF3 = P['pf3'] and kind == 0
    def pf3_off(idr, chunk):
        A(f"s_and_b32 s4, s{idr}, 7\ns_lshr_b32 s5, s{idr}, 3\ns_mul_i32 s94, s4, 896\ns_mul_i32 s3, s5, 28672\ns_add_u32 s94, s94, s3")
        A("s_lshl_b32 s4, s4, 18\ns_lshl_b32 s5, s5, 13\ns_add_u32 s4, s4, s5\ns_cmp_ge_u32 s26, 2\ns_cselect_b32 s94, s4, s94")
        if chunk: A(f"s_mul_i32 s3, s95, {chunk}\ns_add_u32 s94, s94, s3")
    if kind == 0:
        A(f"s_cmp_eq_u32 s26, 1\ns_cselect_b32 s4, s{KWU}, s{KWG}\ns_cselect_b32 s5, s{KWU+1}, s{KWG+1}")
        A(f"s_cmp_eq_u32 s26, 2\ns_cselect_b32 s4, s{KBRE}, s4\ns_cselect_b32 s5, s{KBRE+1}, s5")
        A(f"s_cmp_eq_u32 s26, 3\ns_cselect_b32 s4, s{KBIM}, s4\ns_cselect_b32 s5, s{KBIM+1}, s5")
        srd(84, 4, 1024 * 7168)
        A(f"s_mov_b32 s95, 917504\ns_cmp_ge_u32 s26, 2\ns_cselect_b32 s86, {2*MB}, s86\ns_cselect_b32 s95, 256, s95")
        A("v_min_u32 v10, 27, v1\nv_mul_u32_u24 v11, 9363, v10\nv_lshrrev_b32 v11, 16, v11\nv_mul_u32_u24 v12, 7, v11\nv_sub_u32 v12, v10, v12")
        A("v_mul_u32_u24 v11, 7168, v11\nv_lshl_add_u32 v90, v12, 7, v11")
        A("s_cmp_ge_u32 s26, 2\ns_cbranch_scc0 L2_pf3a")
        A("v_and_b32 v10, 1, v1\nv_bfe_u32 v11, v1, 1, 2\nv_lshlrev_b32 v11, 11, v11\nv_lshl_add_u32 v90, v10, 7, v11\nL2_pf3a:")
        pf3_off(2, 0)
        srd(12, KWG, 1024 * 7168); srd(16, KWU, 1024 * 7168)
        A("s_mov_b32 s3, 4682")
        A("s_and_b32 s4, s26, 1\ns_lshl_b32 s4, s4, 2\ns_lshr_b32 s5, s26, 1\ns_lshl_b32 s5, s5, 4\ns_or_b32 s4, s4, s5")
        for v, add in ((2, 0), (3, 64)):
            A(f"v_add_u32 v10, {add}, v1\nv_mul_u32_u24 v11, s3, v10\nv_lshrrev_b32 v11, 16, v11")
            A("v_mul_u32_u24 v12, 14, v11\nv_sub_u32 v12, v10, v12")
            A("v_and_b32 v13, 3, v11\nv_lshrrev_b32 v11, 2, v11\nv_lshl_or_b32 v13, v11, 3, v13")
            A(f"v_or_b32 v13, s4, v13\nv_mul_u32_u24 v13, 7168, v13\nv_lshl_add_u32 v{v}, v12, 4, v13")
        A("v_subrev_u32 v3, 1024, v3\ns_mul_i32 s22, s26, 1792")
        A("s_waitcnt vmcnt(0)")
        if PF3:
            for _ in range(P['pfa']): touch()
    else:
        A("v_lshlrev_b32 v10, 2, v1\ns_cmp_eq_u32 s26, 1\ns_cbranch_scc1 L2_in1\ns_cmp_eq_u32 s26, 2\ns_cbranch_scc1 L2_in2\ns_cmp_eq_u32 s26, 3\ns_cbranch_scc1 L2_in3")
        A(f"s_lshl_b32 s3, s2, 8\ns_add_u32 s3, s3, {WS_TBUF}\nv_mov_b32 v11, -1\nbuffer_store_dword v11, v10, s[8:11], s3 offen sc1\ns_branch L2_in4")
        A(f"L2_in1:\ns_lshl_b32 s3, s2, 5\ns_add_u32 s3, s3, {WS_FLAGS}\nv_mov_b32 v11, 0\ns_mov_b64 exec, 0xff\nbuffer_store_dword v11, v10, s[8:11], s3 offen\ns_mov_b64 exec, -1\ns_branch L2_in4")
        A("L2_in2:")
        A("s_getpc_b64 s[16:17]\nL2_pc:\ns_sub_u32 s16, s16, L2_pc-k1_g1_kernel\ns_subb_u32 s17, s17, 0")
        A("s_lshr_b32 s3, s2, 3\ns_lshl_b32 s3, s3, 4\nv_and_b32 v11, 15, v1\nv_add_u32 v11, s3, v11\nv_lshlrev_b32 v11, 7, v11\ns_mov_b32 s3, L3_end-k1_g1_kernel\nv_min_u32 v11, s3, v11")
        if not P['pfc']: A("v_mov_b32 v11, 0")
        A("global_load_dword v91, v11, s[16:17]\ns_branch L2_in4")
        A("L2_in3:")
        ticket_issue(96, 5, 16)
        A("s_mov_b32 s79, s3")
        A("L2_in4:")
        A(f"s_lshl_b32 s3, s26, 8\ns_add_u32 s3, s3, {G1_SCR}\nv_add_u32 v13, s3, v10\nv_mov_b32 v14, -1\nds_write_b32 v13, v14")
        A(f"s_cmp_ge_u32 s26, 2\ns_cselect_b32 s4, s{KBIM}, s{KBRE}\ns_cselect_b32 s5, s{KBIM+1}, s{KBRE+1}")
        srd(12, 4, 2 * MB)
        A("v_mov_b32 v2, v4")
        A("v_lshrrev_b32 v10, 2, v1\nv_lshrrev_b32 v11, 4, v1\nv_sub_u32 v11, 0, v11\nv_xor_b32 v11, v11, v1\nv_and_b32 v11, 3, v11")
        A("s_and_b32 s4, s26, 1\ns_lshl_b32 s4, s4, 4\nv_add_u32 v10, s4, v10\nv_lshlrev_b32 v10, 11, v10\nv_lshl_add_u32 v3, v11, 4, v10")
        A("s_lshl_b32 s22, s26, 12\ns_lshl_b32 s23, s26, 10")
        A("s_waitcnt vmcnt(1)")
    if P['dbg'] == 5: stamp(0, 3, 16, 25, 4)
    ln_phase(kind)
    srd(68, KCIM if kind else KCRE, 2 * MB); srd(72, KWD, 3584 * 2048)
    A("s_lshl_b32 s3, s2, 3\ns_add_u32 s3, s3, s25\ns_mul_i32 s76, s3, 3584\ns_lshl_b32 s3, s2, 2\ns_add_u32 s3, s3, s26\ns_lshl_b32 s77, s3, 11\ns_sub_u32 s78, 6, s26")
    if kind == 1:
        A("s_cmp_lg_u32 s26, 3\ns_cbranch_scc1 L2_notk\ns_mov_b32 s3, s79")
        ticket_finish(96, 5, 16, 0, "L2_tk", TKL)
        A("L2_notk:")
    if P['dbg'] == 5: stamp(1, 3, 16, 25, 4)
    A("s_waitcnt vmcnt(0) lgkmcnt(0)")
    if kind == 0:
        A("s_barrier\ns_cmp_lg_u32 s26, 0\ns_cbranch_scc1 L2_nosig\ns_lshl_b32 s29, s7, 5\nv_mov_b32 v10, 1\ns_mov_b64 exec, 1\nbuffer_atomic_add v10, off, s[96:99], s29 sc1\ns_mov_b64 exec, -1\nL2_nosig:")
        ticket_read(TKL, False)
    else:
        ticket_read(TKL)
    if not P['tk1']: A("s_mov_b32 s6, s2")
    if P['dbg'] == 5: stamp(2, 3, 16, 25, 4)
    A("s_and_b32 s27, s6, 7\ns_lshl_b32 s27, s27, 2\ns_bfe_u32 s3, s6, 0x20003\ns_add_u32 s27, s27, s3\ns_lshr_b32 s28, s6, 5")
    if kind == 0: A("s_mul_i32 s20, s27, 224")
    else: A(f"s_lshl_b32 s20, s28, 14\ns_add_u32 s20, s20, {WS_XN}\ns_lshl_b32 s21, s27, 16")
    def late_setup():
        A(f"s_lshl_b32 s67, s27, 11\ns_add_u32 s67, s67, {WS_TBUF}")
        A(f"s_lshl_b32 s65, s28, 1\ns_lshr_b32 s3, s26, 1\ns_add_u32 s65, s65, s3\ns_lshl_b32 s65, s65, 14\ns_and_b32 s3, s26, 1\ns_lshl_b32 s3, s3, 11\ns_add_u32 s65, s65, s3\ns_add_u32 s65, s65, {WS_ACT}")
        A(f"s_mul_i32 s64, s27, 7\ns_add_u32 s64, s64, {128 + (5 if kind else 0)}")
        if kind == 0: pf3_off(6, P['pfa'])
        else:
            A("v_and_b32 v10, 15, v1\ns_lshl_b32 s3, s27, 5\nv_add_u32 v10, s3, v10\nv_lshlrev_b32 v10, 1, v10")
            for k, kp in enumerate((KLRE, KLIM, KLDT)):
                srd(16, kp, 2048)
                for b in range(2): A(f"buffer_load_ushort v{80+3*b+k}, v10, s[16:19], 0 offen offset:{32*b}")
    pfb = P['pfb'] if PF3 else 0
    WP = P['wpre']
    if kind == 0:
        for sl in range(WP): E(dma(sl))
        late_setup()
        A("s_barrier")
        for sl in range(WP, 4): E(dma(sl))
        A("s_waitcnt vmcnt(12)\ns_barrier")
        for _ in range(pfb): touch()
    else:
        for sl in range(4): E(dma(sl, 'b'))
        A("s_cmp_lg_u32 s26, 0\ns_cbranch_scc1 L2_xgot\ns_lshl_b32 s29, s28, 5\ns_mov_b32 s5, 0\nL2_xpoll:")
        A(f"s_sleep {P['slp']}\nbuffer_load_dword v10, off, s[96:99], s29 sc1\ns_waitcnt vmcnt(0)\nv_readfirstlane_b32 s3, v10\ns_cmp_ge_u32 s3, 32\ns_cbranch_scc1 L2_xgot\ns_add_u32 s5, s5, 1\ns_cmp_lt_u32 s5, 0x40000\ns_cbranch_scc1 L2_xpoll")
        A("L2_xgot:\ns_barrier")
        if P['dbg'] == 5: stamp(3, 3, 16, 25, 4)
        E(dma(0, 'a')); E(dma(1, 'a'))
        late_setup()
        A("s_waitcnt vmcnt(10)\ns_barrier")
    npre = P['pfa'] + P['pfb']
    stamp(1, 1, 16, 25, 0)
    first_reads()
    A("s_mov_b32 s24, 7")
    if kind == 0:
        stage(0, True, 2*ND + pfb, czero=True)
        stage(1, True, 2*ND + pfb)
    else:
        stage(0, True, 10, early=2, dslot=3, czero=True, epart='a', dpart='a')
        stage(1, True, 9, early=0)
    A(f"s_branch L2_mid{kind}")
    A(f".p2align 4\nL2_loop{kind}:")
    if P['dbg'] == 2 and kind == 0: stamp(7, 3, 68, 26, 0, dyn=24)
    q.forget()
    if P['pf2']:
        A(f"s_cmp_lg_u32 s24, s78\ns_cbranch_scc1 L2_npf{kind}")
        A("buffer_load_dword v92, v94, s[72:75], s76 offen\nbuffer_load_dword v93, v95, s[68:71], s77 offen")
        A(f"L2_npf{kind}:")
    if PF3 and npre < 8:
        A(f"s_cmp_lt_u32 s24, {npre - 1}\ns_cbranch_scc1 L2_npf3")
        touch()
        A("L2_npf3:")
    for s in range(4):
        if s == 2:
            A(f"L2_mid{kind}:"); q.forget()
        stage(s, True, 2*ND)
    A(f"s_sub_u32 s24, s24, 1\ns_cmp_lg_u32 s24, 0\ns_cbranch_scc1 L2_loop{kind}")
    q.forget()
    fill = ssm_params() if kind == 1 else []
    c0 = -2 * 0.7978845608028654 * LOG2E
    T = 16
    fill += ("v_and_b32 v12, 3, v1\nv_bfe_u32 v13, v1, 3, 1\nv_lshl_or_b32 v12, v13, 2, v12\nv_bfe_u32 v13, v1, 2, 1\nv_lshl_or_b32 v12, v13, 3, v12\n"
             "v_and_b32 v13, 48, v1\nv_or_b32 v12, v12, v13\nv_lshlrev_b32 v10, 4, v12\nv_xor_b32 v11, 128, v10\nv_add_u32 v11, 1024, v11\n"
             f"v_and_b32 v12, 15, v1\nv_lshlrev_b32 v12, 4, v12\nv_add_u32 v13, {G1_SCR}, v12\ns_lshl_b32 s3, s26, 8\nv_add_u32 v14, s3, v13").split('\n')
    nf = 4 if kind == 1 else 1
    stage(0, False, 2*ND, fill=fill, nfill=nf)
    stage(1, False, 0, fill=fill, nfill=nf, post_bar=("s_setprio 2" if kind == 1 else None))
    for x in fill: A(x)
    if kind == 1: A("v_and_b32 v86, 7, v1\nv_lshlrev_b32 v86, 5, v86\nbuffer_load_dword v87, v86, s[96:99], 0 offen sc1")
    stage(2, False, 0, bar=False); stage(3, False, 0, last=True)
    stamp(2 + kind, 1, 16, 26, 0)
    A(f"v_mov_b32 v{T+20}, {fh(c0*0.044715)}\nv_mov_b32 v{T+21}, {fh(c0)}")
    if kind == 0:
        NPK[0] = P['npk'] & 1
        for j in range(5): gelu_pair(2*j, 2*j+1, T)
        NPK[0] = 0
        stamp(4, 1, 16, 26, 0)
        return
    def seq(b, part): return [acc(4 + 2*b + part, i) + r for i in range(4) for r in range(4)]
    cur = {b: (seq(b,0)[0], seq(b,1)[0]) for b in range(2)}
    NPK[0] = (P['npk'] >> 1) & 1
    for j in range(1, 8):
        nx = {b: (48 + 8*(j&1) + 4*b, 50 + 8*(j&1) + 4*b) for b in range(2)}
        for b in range(2):
            A(pk('fma', nx[b][0], pr(b,0), cur[b][0], seq(b,0)[2*j], sel='hnn')); A(pk('fma', nx[b][1], pr(b,0), cur[b][1], seq(b,1)[2*j], sel='hnn'))
        for b in range(2):
            A(pk('fma', nx[b][0], pr(b,2), cur[b][1], nx[b][0], sel='hnn', neg=[1,0,0])); A(pk('fma', nx[b][1], pr(b,2), cur[b][0], nx[b][1], sel='hnn'))
        cur = nx
    for b in range(2):
        er, ei = cur[b]
        A(f"v_fma_f32 v{48+2*b}, v{pr(b,0)}, v{er}, v{er+1}\nv_fma_f32 v{49+2*b}, v{pr(b,0)}, v{ei}, v{ei+1}")
    for b in range(2):
        er, ei = cur[b]
        A(f"v_fma_f32 v{48+2*b}, -v{pr(b,2)}, v{ei}, v{48+2*b}\nv_fmac_f32 v{49+2*b}, v{pr(b,2)}, v{er}")
    for k in range(4): A(f"v_mov_b32 v{52+k}, v{48+k}")
    for k in range(4): A(f"v_permlane16_swap_b32 v{48+k}, v{52+k}")
    cma2([(56+2*b, pr(b,4), 48+2*b, 52+2*b, 72+2*b) for b in range(2)])
    for k in range(4): A(f"v_mov_b32 v{60+k}, v{56+k}")
    for k in range(4): A(f"v_permlane32_swap_b32 v{56+k}, v{60+k}")
    cma2([(64+2*b, pr(b,6), 56+2*b, 60+2*b, 72+2*b) for b in range(2)])
    for k in range(4): A(f"v_min_u32 v{64+k}, -2, v{64+k}")
    A("s_mov_b64 exec, 0xffff\nds_write_b128 v14, v[64:67]\ns_mov_b64 exec, -1")
    A("v_and_b32 v15, 32, v1\nv_cmp_ne_u32 vcc, 0, v15\nv_mov_b32 v15, 0")
    for k in range(4): A(f"v_cndmask_b32 v{68+k}, v15, v{56+k}, vcc")
    cma2([(60+2*b, pr(b,4), 68+2*b, 48+2*b, 72+2*b) for b in range(2)])
    A("v_and_b32 v15, 16, v1\nv_cmp_ne_u32 vcc, 0, v15")
    for k in range(4): A(f"v_cndmask_b32 v{68+k}, v{68+k}, v{60+k}, vcc")
    NPK[0] = 0
    A("s_mov_b32 s5, 0\nL2_cchk:\ns_waitcnt vmcnt(0)\nv_cmp_gt_u32 vcc, 32, v87\ns_cbranch_vccz L2_lspin")
    A("buffer_load_dword v87, v86, s[96:99], 0 offen sc1\ns_add_u32 s5, s5, 1\ns_cmp_lt_u32 s5, 0x40000\ns_cbranch_scc1 L2_cchk")
    A("L2_lspin:")
    for w in range(4): A(f"ds_read_b128 v[{48+4*w}:{51+4*w}], v13 offset:{256*w}")
    A("s_waitcnt lgkmcnt(0)\nv_max_u32 v72, v48, v49")
    for k in range(2, 16, 2): A(f"v_max3_u32 v72, v72, v{48+k}, v{49+k}")
    A("v_cmp_eq_u32 vcc, -1, v72\ns_cbranch_vccnz L2_lspin")
    A("s_cmp_lg_u32 s26, 0\ns_cbranch_scc1 L2_nopub")
    for w in range(1, 4):
        cma2([(64+2*b, pr(b,8), (48 if w == 1 else 64)+2*b, 48+4*w+2*b, 72+2*b) for b in range(2)])
    for k in range(4): A(f"v_min_u32 v{64+k}, -2, v{64+k}")
    A("s_lshl_b32 s3, s28, 8\ns_add_u32 s3, s3, s67\ns_mov_b64 exec, 0xffff")
    A("buffer_store_dwordx4 v[64:67], v12, s[8:11], s3 offen sc1\ns_mov_b64 exec, -1")
    A("L2_nopub:")
    stamp(6, 1, 76, 26, 0)
    for b in range(2):
        cf = pr(b,12)
        for t in range(0, 16, 4):
            for u in range(2):
                re = seq(b,0)[t+2*u]
                A(pk('mul', 72+4*u, cf, re, sel='ln')); A(pk('mul', 74+4*u, cf, re, sel='hn'))
            for u in range(2):
                re, im = seq(b,0)[t+2*u], seq(b,1)[t+2*u]
                A(pk('fma', re, cf, im, 72+4*u, sel='hnn', neg=[1,0,0])); A(pk('fma', im, cf, im, 74+4*u, sel='lnn', neg=[1,0,1]))
        A(f"v_sub_f32 v72, 0, v{pr(b,2)}")
        for t in range(0, 16, 2):
            re, im = seq(b,0)[t], seq(b,1)[t]
            A(f"v_fmac_f32 v{re+1}, v{pr(b,0)}, v{re}\nv_fmac_f32 v{im+1}, v{pr(b,0)}, v{im}")
        for t in range(0, 16, 2):
            re, im = seq(b,0)[t], seq(b,1)[t]
            A(f"v_fmac_f32 v{re+1}, v{pr(b,2)}, v{im}\nv_fmac_f32 v{im+1}, v72, v{re}")
    gelu_pair(0, 1, T)
    gelu_pair(2, 3, T)
    stamp(7, 1, 76, 26, 0)
    for k in range(4): A(f"v_mov_b32 v{64+k}, 0")
    A("s_cmp_eq_u32 s28, 0\ns_cbranch_scc1 L2_nocarry")
    A("s_sub_u32 s4, s28, 1\ns_mov_b32 s5, 0")
    TB = 16
    A("L2_poll:")
    for j in range(7):
        A(f"s_min_u32 s3, s4, {j}\ns_lshl_b32 s3, s3, 8\ns_add_u32 s3, s3, s67")
        A(f"buffer_load_dwordx4 v[{TB+4*j}:{TB+4*j+3}], v12, s[8:11], s3 offen sc1")
    A(f"s_waitcnt vmcnt(0)\nv_max_u32 v72, v{TB}, v{TB+1}")
    for k in range(2, 28, 2): A(f"v_max3_u32 v72, v72, v{TB+k}, v{TB+k+1}")
    A("v_cmp_eq_u32 vcc, -1, v72\ns_cbranch_vccz L2_got\ns_sleep 1\ns_add_u32 s5, s5, 1\ns_cmp_lt_u32 s5, 0x40000\ns_cbranch_scc1 L2_poll")
    A("L2_got:")
    for k in range(4): A(f"v_mov_b32 v{64+k}, v{TB+k}")
    for j in range(1, 7):
        A(f"s_cmp_le_u32 s28, {j}\ns_cbranch_scc1 L2_nocarry")
        cma2([(64+2*b, pr(b,10), 64+2*b, TB+4*j+2*b, 72+2*b) for b in range(2)])
    A("L2_nocarry:")
    for w in range(3):
        A(f"s_cmp_le_u32 s26, {w}\ns_cbranch_scc1 L2_hw")
        cma2([(64+2*b, pr(b,8), 64+2*b, 48+4*w+2*b, 72+2*b) for b in range(2)])
    A("L2_hw:")
    cma2([(64+2*b, pr(b,14), 64+2*b, 68+2*b, 72+2*b) for b in range(2)])
    for b in range(2): A(f"v_mul_f32 v{72+2*b}, v{pr(b,12)}, v{64+2*b}\nv_mul_f32 v{73+2*b}, v{pr(b,13)}, v{64+2*b}")
    for b in range(2): A(f"v_fma_f32 v{49+4*b}, -v{pr(b,13)}, v{65+2*b}, v{72+2*b}\nv_fma_f32 v{51+4*b}, -v{pr(b,12)}, v{65+2*b}, -v{73+2*b}")
    A("s_lshr_b32 s66, s27, 1\ns_lshl_b32 s66, s66, 18\ns_and_b32 s3, s27, 1\ns_lshl_b32 s3, s3, 13\ns_add_u32 s66, s66, s3\ns_add_u32 s66, s66, s65")
    n = 0
    for t in range(0, 16, 2):
        pv = {b: ((48+4*b, 50+4*b) if t == 0 else (seq(b,0)[t-2], seq(b,1)[t-2])) for b in range(2)}
        for b in range(2):
            re, im = seq(b,0)[t], seq(b,1)[t]
            A(pk('fma', re, pr(b,0), pv[b][0], re, sel='nhn')); A(pk('fma', im, pr(b,0), pv[b][1], im, sel='nhn'))
        for b in range(2):
            re, im = seq(b,0)[t], seq(b,1)[t]
            A(pk('fma', re, pr(b,2), pv[b][1], re, sel='nhn')); A(pk('fma', im, pr(b,2), pv[b][0], im, sel='nhn', neg=[1,0,0]))
        if t in (6, 14):
            h = t >> 3
            for b in range(2):
                for part in range(2):
                    sq = seq(b, part)
                    o = 16 + 4 * n; n += 1
                    A(f"s_add_u32 s3, s66, {part*16*262144 + b*4096}")
                    for k in range(4): A(f"v_cvt_pk_bf16_f32 v{o+k}, v{sq[8*h+2*k]}, v{sq[8*h+2*k+1]}")
                    A(f"buffer_store_dwordx4 v[{o}:{o+3}], v{10+h}, s[8:11], s3 offen sc1")
    stamp(5, 1, 72, 26, 0)

def g2():
    NA = 32 + XO; NBS = 56 - XO
    FR = [32, 64]; ACCO = 96; ACCY = 160; XR = 224; XA = 28
    XL = 131072
    kstart('k2_g2_kernel')
    A("s_cmp_ge_u32 s2, 256\ns_cbranch_scc1 L3_end")
    A("s_load_dwordx16 s[32:47], s[0:1], 0\ns_load_dwordx16 s[48:63], s[0:1], 64")
    A("v_and_b32 v2, 63, v0\nv_lshrrev_b32 v1, 6, v0\nv_readfirstlane_b32 s26, v1")
    def decode():
        A("s_and_b32 s27, s6, 1\ns_bfe_u32 s28, s6, 0x20001\ns_lshr_b32 s29, s6, 3")
        A("s_and_b32 s30, s28, 1\ns_lshl_b32 s30, s30, 3\ns_and_b32 s31, s29, 7\ns_add_u32 s30, s30, s31")
        A("s_lshr_b32 s31, s28, 1\ns_lshl_b32 s31, s31, 2\ns_lshr_b32 s3, s29, 3\ns_add_u32 s31, s31, s3")
    def exch(wreg):
        A(f"s_lshl_b32 s4, s30, 3\ns_add_u32 s4, s4, s31\ns_lshl_b32 s70, s4, 16\ns_lshl_b32 s3, s{wreg}, 14\ns_add_u32 s70, s70, s3\ns_add_u32 s70, s70, {WS_OBUF}")
        A(f"s_lshl_b32 s71, s4, 6\ns_lshl_b32 s3, s{wreg}, 4\ns_add_u32 s71, s71, s3\ns_add_u32 s71, s71, {WS_FLAGS}")
        A(f"s_lshr_b32 s3, s{wreg}, 1\ns_add_u32 s3, s3, {NA}\ns_and_b32 s3, s3, 3\ns_lshl_b32 s3, s3, 15\ns_and_b32 s4, s{wreg}, 1\ns_lshl_b32 s4, s4, 14\ns_add_u32 s72, s3, s4")
    def getid():
        if P['tk2']: ticket_read(XL)
        else: A("s_mov_b32 s6, s2")
        decode()
    def fold():
        if P['dbg'] != 9: return
        lab = f"Lf_{len(A.lines)}"
        A(f"s_cmp_lg_u32 s26, 0\ns_cbranch_scc1 {lab}\ns_waitcnt vmcnt(0)")
        srd(20, KDBG, 256)
        offs = [1*32768+0, 1*32768+16, 1*32768+32, 1*32768+80, 2*32768+0, 2*32768+16, 2*32768+32, 2*32768+48]
        A("v_mov_b32 v4, 0")
        for l, o in enumerate(offs): A(f"s_mov_b32 s3, {o}\nv_writelane_b32 v4, s3, {l}")
        A(f"s_lshl_b32 s3, s2, 7\ns_add_u32 s3, s3, {WS_STAMP}\ns_mov_b64 exec, 0xff\nbuffer_load_dword v5, v4, s[8:11], s3 offen sc1\nv_lshlrev_b32 v6, 3, v2\ns_waitcnt vmcnt(0)")
        A("v_not_b32 v7, v5\nbuffer_atomic_umax v5, v6, s[20:23], 0 offen\nbuffer_atomic_umax v7, v6, s[20:23], 0 offen offset:4\ns_mov_b64 exec, -1")
        A(f"{lab}:")
    A("s_cmp_ge_u32 s26, 4\ns_cbranch_scc1 L3_loader")
    A("s_waitcnt lgkmcnt(0)")
    srd(8, KWS, WS_SIZE)
    if P['tk2']:
        A("s_cmp_lg_u32 s26, 0\ns_cbranch_scc1 L3_notk")
        ticket_issue(8, 7, WS_CNT2)
        ticket_finish(8, 7, WS_CNT2, 0, "L3_tk", XL)
        A("L3_notk:")
    stamp(0, 2, 16, 26, 1)
    getid()
    A("s_and_b32 s64, s26, 1\ns_lshr_b32 s65, s26, 1")
    A("v_lshrrev_b32 v6, 4, v2\nv_bfe_u32 v7, v2, 2, 2\nv_and_b32 v8, 3, v2")
    A("v_and_b32 v5, 15, v2\ns_lshl_b32 s3, s30, 7\ns_lshl_b32 s4, s64, 6\ns_add_u32 s3, s3, s4\nv_add_u32 v5, s3, v5")
    A("s_lshl_b32 s3, s31, 7\ns_lshl_b32 s4, s65, 6\ns_add_u32 s3, s3, s4\nv_lshl_add_u32 v9, v6, 2, s3")
    A("v_lshlrev_b32 v27, 12, v5\nv_lshl_add_u32 v27, v9, 2, v27")
    ST = XR; DP = XR + 8
    A("s_cmp_lg_u32 s27, 0\ns_cbranch_scc1 L3_nost")
    srd(16, KDSK, 2048)
    A(f"v_lshlrev_b32 v5, 3, v5\nv_lshlrev_b32 v9, 1, v9\ns_mov_b32 s3, {WS_STATS}")
    for i in range(4): A(f"buffer_load_dwordx2 v[{ST+2*i}:{ST+1+2*i}], v5, s[8:11], s3 offen offset:{128*i}")
    for n in range(4): A(f"buffer_load_dwordx2 v[{DP+2*n}:{DP+1+2*n}], v9, s[16:19], 0 offen offset:{32*n}")
    A("L3_nost:")
    A("v_lshrrev_b32 v9, 1, v6\nv_lshlrev_b32 v9, 12, v9\ns_lshl_b32 s3, s64, 11\nv_add_u32 v9, s3, v9")
    A("v_lshrrev_b32 v3, 1, v8\nv_lshl_add_u32 v9, v3, 10, v9")
    A("v_and_b32 v4, 1, v6\nv_lshl_or_b32 v4, v4, 2, v7")
    A("v_lshl_or_b32 v5, v3, 3, v4\nv_lshl_add_u32 v9, v5, 4, v9")
    A("v_and_b32 v5, 1, v8\nv_lshl_add_u32 v10, v5, 3, v9\nv_xor_b32 v11, 128, v10")
    A("v_lshl_add_u32 v9, v6, 3, v7\nv_lshlrev_b32 v9, 8, v9\nv_lshl_add_u32 v9, v8, 3, v9\nv_add_u32 v9, 16384, v9")
    for n in range(4):
        A(f"s_lshl_b32 s3, s65, 2\ns_add_u32 s3, s3, {n}\nv_xor_b32 v5, s3, v4\nv_lshl_add_u32 v{12+n}, v5, 5, v9")
    A("v_and_b32 v5, 15, v2\nv_and_b32 v9, 7, v2\nv_xor_b32 v9, v9, v6\nv_lshlrev_b32 v9, 4, v9\nv_lshl_add_u32 v9, v5, 7, v9")
    A("s_lshl_b32 s3, s65, 13\ns_add_u32 s3, s3, 16384\nv_add_u32 v16, s3, v9\nv_xor_b32 v17, 64, v16")
    for r in range(8): A(f"v_add_u32 v{18+r}, 0x10000, v{10+r}")
    A("v_and_b32 v3, 15, v2\nv_lshrrev_b32 v4, 1, v6\ns_lshl_b32 s3, s65, 3\nv_or_b32 v4, s3, v4\nv_xor_b32 v4, v4, v3\nv_lshlrev_b32 v4, 4, v4")
    A(f"v_lshl_add_u32 v4, v3, 8, v4\nv_and_b32 v3, 1, v6\nv_lshl_add_u32 v4, v3, 3, v4\ns_lshl_b32 s3, s64, 14\ns_add_u32 s3, s3, {XL}\nv_add_u32 v4, s3, v4")
    for n in range(4): A(f"v_xor_b32 v{XA+n}, {32*n}, v4")
    exch(26)
    for r in range(0, 64, 2): A(f"v_pk_mov_b32 v[{ACCO+r}:{ACCO+r+1}], 0, 0")
    q = LQ()
    def reads(typ, slot, hh, buf):
        ab = 10 + 8 * (slot >> 1); so = (slot & 1) * 32768; f = FR[buf]
        def ra(i):
            off = so + hh * 8192 + 256 * i
            return [((buf, 'a', i, 0), f"ds_read_b64_tr_b16 v[{f+4*i}:{f+4*i+1}], v{ab} offset:{off}"),
                    ((buf, 'a', i), f"ds_read_b64_tr_b16 v[{f+4*i+2}:{f+4*i+3}], v{ab+1} offset:{off}")]
        def rb(n):
            g = f + 16 + 4 * n
            if typ == 'o':
                off = so + hh * 8192
                return [((buf, 'b', n, 0), f"ds_read_b64_tr_b16 v[{g}:{g+1}], v{ab+2+n} offset:{off}"),
                        ((buf, 'b', n), f"ds_read_b64_tr_b16 v[{g+2}:{g+3}], v{ab+2+n} offset:{off+1024}")]
            return [((buf, 'b', n), f"ds_read_b128 v[{g}:{g+3}], v{ab+6+hh} offset:{so + 2048*n}")]
        return ra(0) + rb(0) + ra(1) + ra(2) + ra(3) + rb(1) + rb(2) + rb(3)
    def half(typ, buf, rds, bar):
        accb = ACCO if typ == 'o' else ACCY
        f = FR[buf]
        for n in range(4):
            for i in range(4):
                k = n * 4 + i
                if bar and k == 4:
                    A("s_waitcnt lgkmcnt(0)"); q.all_done(); A("s_barrier")
                if k == 0: q.wait((buf, 'a', 3), (buf, 'b', 0))
                elif k == 4: q.wait((buf, 'b', 1))
                elif k == 8: q.wait((buf, 'b', 3))
                ii = 3 - i if n & 1 else i
                a = accb + (n * 4 + ii) * 4
                A(f"v_mfma_f32_16x16x32_bf16 v[{a}:{a+3}], v[{f+16+4*n}:{f+16+4*n+3}], v[{f+4*ii}:{f+4*ii+3}], v[{a}:{a+3}]")
                if bar and k < 4: continue
                left = 15 - k
                cnt = (len(rds) + left - 1) // left if left > 0 else len(rds)
                for _ in range(min(cnt, len(rds))):
                    t, x = rds.pop(0); q.issue(t, x)
        assert not rds
    A("s_cmp_lg_u32 s27, 0\ns_cbranch_scc1 L3_typeB")
    for r in range(0, 64, 2): A(f"v_pk_mov_b32 v[{ACCY+r}:{ACCY+r+1}], 0, 0")
    A("s_barrier")
    stamp(1, 2, 64, 26, 0)
    for t, x in reads('y', 0, 0, 0): q.issue(t, x)
    A("s_mov_b32 s24, 7")
    A(".p2align 4\nL3_yloop:")
    A(f"s_cmp_eq_u32 s24, {P['pz']}\ns_cbranch_scc1 L3_pause\nL3_back:")
    q.forget()
    for s in range(4):
        half('y', 0, reads('y', s, 1, 1), False)
        half('y', 1, reads('y', (s+1) & 3, 0, 0), True)
    A("s_sub_u32 s24, s24, 1\ns_cmp_lg_u32 s24, 0\ns_cbranch_scc1 L3_yloop")
    q.forget()
    for s in range(4):
        half('y', 0, reads('y', s, 1, 1), False)
        half('y', 1, reads('y' if s < 3 else 'o', (s+1) & 3, 0, 0), True)
    stamp(6, 2, 4, 26, 0)
    A(f"s_mov_b32 s24, {XO}\ns_branch L3_oloop")
    A("L3_pause:\ns_waitcnt vmcnt(0) lgkmcnt(0)")
    stamp(4, 2, 4, 26, 0)
    XB = FR[1]; DF = XR + 16; TT = XR + 20
    for n in range(4):
        for i in range(4): A(f"ds_read_b64 v[{XB+(n*4+i)*2}:{XB+(n*4+i)*2+1}], v{XA+n} offset:{4096*i}")
        if n == 2: A("s_waitcnt lgkmcnt(8)")
    for i in range(4): A(f"v_mul_f32 v{ST+2*i}, v{ST+2*i}, v{ST+1+2*i}")
    for n in range(4):
        for hw in range(2): A(f"v_lshlrev_b32 v{DF+2*hw}, 16, v{DP+2*n+hw}\nv_and_b32 v{DF+1+2*hw}, 0xffff0000, v{DP+2*n+hw}")
        A(f"s_waitcnt lgkmcnt({12-4*n})")
        for i in range(4):
            r = XB + (n * 4 + i) * 2; a = ACCY + (n * 4 + i) * 4; t = TT + 4 * (i & 1)
            for hw in range(2): A(f"v_lshlrev_b32 v{t+2*hw}, 16, v{r+hw}\nv_and_b32 v{t+2*hw+1}, 0xffff0000, v{r+hw}")
            for hw in range(2): A(pk('fma', t+2*hw, t+2*hw, ST+2*i, ST+2*i, sel='nhl', neg=[0,0,1]))
            for hw in range(2): A(pk('fma', a+2*hw, t+2*hw, DF+2*hw, a+2*hw))
    stamp(5, 2, 4, 26, 0)
    A("s_nop 1\ns_branch L3_back")
    A("L3_typeB:")
    A("s_barrier")
    stamp(1, 2, 64, 26, 0)
    for t, x in reads('o', 0, 0, 0): q.issue(t, x)
    A(f"s_mov_b32 s24, {NBS}")
    A(".p2align 4\nL3_oloop:")
    q.forget()
    for s in range(4):
        half('o', 0, reads('o', s, 1, 1), False)
        A("s_sub_u32 s24, s24, 1\ns_cmp_eq_u32 s24, 0\ns_cbranch_scc1 L3_otail")
        half('o', 1, reads('o', (s+1) & 3, 0, 0), True)
    A("s_branch L3_oloop")
    A("L3_otail:")
    A("s_waitcnt lgkmcnt(0)"); q.all_done()
    A("s_cmp_lg_u32 s27, 0\ns_cbranch_scc1 L3_nox")
    for n in range(4):
        for i in range(4): A(f"ds_read_b64 v[{XR+(n*4+i)*2}:{XR+(n*4+i)*2+1}], v{XA+n} offset:{4096*i}")
        if n == 2: A("s_waitcnt lgkmcnt(8)")
    A("L3_nox:")
    half('o', 1, [], False)
    stamp(2, 2, 4, 26, 0)
    A("v_lshlrev_b32 v5, 4, v2\nv_mov_b32 v9, 0")
    A("s_cmp_eq_u32 s27, 0\ns_cbranch_scc1 L3_finish")
    for k in range(16):
        if k % 4 == 0 and k: A("s_add_u32 s70, s70, 4096")
        A(f"buffer_store_dwordx4 v[{ACCO+4*k}:{ACCO+4*k+3}], v5, s[8:11], s70 offen offset:{1024*(k%4)} sc1")
    A("v_mov_b32 v3, 1\ns_waitcnt vmcnt(0)\ns_mov_b64 exec, 1")
    A("buffer_store_dword v3, v9, s[8:11], s71 offen sc1\ns_mov_b64 exec, -1")
    stamp(3, 2, 4, 26, 0)
    fold()
    A("s_branch L3_end")
    A("L3_finish:")
    srd(16, KOUT, 8 * MB)
    A(f"v_add_u32 v5, s72, v5\nv_mov_b32 v28, {fh(-LOG2E)}\ns_waitcnt lgkmcnt(0)\ns_barrier")
    for k in range(8): A(f"ds_read_b128 v[{32+4*k}:{35+4*k}], v5 offset:{1024*k}")
    for n in range(4):
        for i in range(4):
            k = n * 4 + i
            o = ACCO + 4*k; y = ACCY + 4*k; p = 32 + 4*k; r = XR + 2*k
            if k < 8: A(f"ds_read_b128 v[{64+4*k}:{67+4*k}], v5 offset:{1024*(k+8)}\ns_waitcnt lgkmcnt(8)")
            else: A(f"s_waitcnt lgkmcnt({15-k})")
            for e in (0, 2): A(pk('add', o+e, o+e, p+e))
            for e in (0, 2): A(pk('mul', p+e, o+e, 28, sel='nl'))
            for e in range(4): A(f"v_exp_f32 v{p+e}, v{p+e}")
            for e in (0, 2): A(pk('mul', o+e, o+e, y+e))
            for e in (0, 2): A(pk('add', p+e, p+e, '1.0', sel='nl'))
            for e in range(4): A(f"v_rcp_f32 v{p+e}, v{p+e}")
            for hw in range(2): A(f"v_lshlrev_b32 v{y+2*hw}, 16, v{r+hw}\nv_and_b32 v{y+2*hw+1}, 0xffff0000, v{r+hw}")
            for e in (0, 2): A(pk('fma', y+e, o+e, p+e, y+e))
            A(f"s_mov_b32 s3, {65536*i}")
            A(f"buffer_store_dwordx4 v[{y}:{y+3}], v27, s[16:19], s3 offen offset:{64*n}{OSTF}")
    stamp(3, 2, 4, 26, 0)
    fold()
    A("s_branch L3_end")
    A("L3_loader:")
    A("s_sub_u32 s26, s26, 4")
    A("s_lshl_b32 s64, s26, 12\nv_lshlrev_b32 v4, 4, v2\nv_add_u32 v3, s64, v4\nv_mov_b32 v22, 0")
    A("v_lshrrev_b32 v5, 4, v2")
    for j in range(4):
        A(f"v_or_b32 v6, {((j>>1)&1)<<2}, v5\nv_bfe_u32 v7, v2, 1, 3\nv_xor_b32 v7, v7, v6\nv_lshlrev_b32 v7, 5, v7")
        A("v_and_b32 v8, 1, v2\nv_lshl_add_u32 v7, v8, 4, v7")
        A(f"s_lshl_b32 s3, s26, 4\ns_add_u32 s3, s3, {4*j}\nv_add_u32 v9, s3, v5\nv_lshl_add_u32 v{14+j}, v9, 11, v7")
        if j: A(f"v_subrev_u32 v{14+j}, {1024*j}, v{14+j}")
    A("v_and_b32 v6, 15, v2")
    for j in range(4):
        A(f"v_add_u32 v7, {4*j}, v5\nv_xor_b32 v8, v6, v7\nv_lshlrev_b32 v8, 4, v8\nv_lshl_add_u32 v{24+j}, v7, 11, v8")
        if j: A(f"v_subrev_u32 v{24+j}, {1024*j}, v{24+j}")
    A("v_lshrrev_b32 v5, 3, v2\nv_and_b32 v6, 7, v2\nv_xor_b32 v6, v6, v5\nv_lshlrev_b32 v6, 4, v6")
    for j in range(4):
        A(f"s_lshl_b32 s3, s26, 5\ns_add_u32 s3, s3, {8*j}\nv_add_u32 v9, s3, v5\nv_lshl_add_u32 v{10+j}, v9, 11, v6")
        if j: A(f"v_subrev_u32 v{10+j}, {1024*j}, v{10+j}")
    A("s_waitcnt lgkmcnt(0)")
    srd(8, KWS, WS_SIZE); srd(16, KX, 4 * MB)
    A("s_mov_b32 s15, 0x20000\ns_mov_b32 s69, 0")
    getid()
    A(f"s_lshl_b32 s66, s30, 14\ns_add_u32 s66, s66, {WS_ACT}")
    WD = f"s_mov_b32 s12, s{KWD}\ns_and_b32 s13, s{KWD+1}, 0xffff\ns_mov_b32 s14, {3584*2048}\ns_lshl_b32 s67, s31, 8\ns_mov_b32 s68, 131072\n" + '\n'.join(f"v_mov_b32 v{10+j}, v{14+j}" for j in range(4))
    A("s_cmp_lg_u32 s27, 0\ns_cbranch_scc1 L3_lB")
    A(f"s_mov_b32 s12, s{KCRE}\ns_and_b32 s13, s{KCRE+1}, 0xffff\ns_mov_b32 s14, {2*MB}\ns_lshl_b32 s67, s31, 18\ns_mov_b32 s68, 128")
    A(f"s_mov_b32 s65, 0\ns_mov_b32 s24, {NA-4}\ns_branch L3_lgo")
    A("L3_lB:")
    A(WD)
    A(f"s_add_u32 s67, s67, {XO*131072}\ns_add_u32 s66, s66, {NA*262144}\ns_mov_b32 s65, 1000\ns_mov_b32 s24, {NBS-4}")
    A("L3_lgo:")
    def trace():
        if P['dbg'] != 6: return
        A("s_memrealtime s[92:93]\ns_waitcnt lgkmcnt(0)\ns_mov_b32 m0, s94\ns_nop 0\nv_writelane_b32 v40, s92, m0\ns_add_u32 s94, s94, 1")
    def trace_dump():
        if P['dbg'] != 6: return
        A(f"s_lshl_b32 s3, s6, 8\ns_add_u32 s3, s3, {WS_STAMP + 262144}\nv_lshlrev_b32 v41, 2, v2\nbuffer_store_dword v40, v41, s[8:11], s3 offen")
    if P['dbg'] == 6: A("s_mov_b32 s94, 0\nv_mov_b32 v40, 0")
    trace()
    def issue():
        A("s_add_u32 m0, s64, s69")
        for j in range(4): A(f"buffer_load_dwordx4 v3, s[8:11], s66 offen offset:{1024*j} lds")
        A("s_add_u32 m0, m0, 16384\ns_add_u32 s66, s66, 262144")
        for j in range(4): A(f"buffer_load_dwordx4 v{10+j}, s[12:15], s67 offen offset:{1024*j} lds")
        A("s_add_u32 s67, s67, s68\ns_add_u32 s69, s69, 32768\ns_and_b32 s69, s69, 0x1ffff\ns_add_u32 s65, s65, 1")
    issue(); issue()
    exch(26)
    A("s_lshl_b32 s73, s30, 18\ns_lshl_b32 s3, s26, 16\ns_add_u32 s73, s73, s3\ns_lshl_b32 s3, s31, 8\ns_add_u32 s73, s73, s3")
    A(f"s_lshl_b32 s74, s26, 13\ns_add_u32 s74, s74, {XL}")
    A("s_waitcnt vmcnt(8)\ns_barrier")
    trace()
    issue(); issue()
    A("s_cmp_lg_u32 s27, 0\ns_cbranch_scc1 L3_lloop")
    for hh in range(2):
        A(f"s_add_u32 m0, s74, {4096*hh}")
        for j in range(4): A(f"buffer_load_dwordx4 v{24+j}, s[16:19], s73 offen offset:{1024*j} lds")
        A("s_add_u32 s73, s73, 32768")
    for r in range(3):
        A("s_waitcnt vmcnt(24)\ns_barrier"); trace(); issue()
    A("s_sub_u32 s24, s24, 3")
    A(".p2align 4\nL3_lloop:")
    A("s_cmp_eq_u32 s65, 16\ns_cbranch_scc0 L3_ln1")
    A(f"s_mov_b32 s12, s{KCIM}\ns_and_b32 s13, s{KCIM+1}, 0xffff\ns_lshl_b32 s67, s31, 18")
    A("L3_ln1:")
    A("s_cmp_eq_u32 s65, 32\ns_cbranch_scc0 L3_ln2")
    A(WD)
    A("L3_ln2:")
    A("s_waitcnt vmcnt(16)\ns_barrier")
    trace()
    issue()
    A("s_sub_u32 s24, s24, 1\ns_cmp_lg_u32 s24, 0\ns_cbranch_scc1 L3_lloop")
    A("s_waitcnt vmcnt(16)\ns_barrier")
    trace()
    A("s_cmp_eq_u32 s27, 0\ns_cbranch_scc1 L3_ltA")
    A("s_waitcnt vmcnt(8)\ns_barrier"); trace(); A("s_waitcnt vmcnt(0)\ns_barrier"); trace(); trace_dump(); A("s_branch L3_end")
    A("L3_ltA:")
    def obuf_dma():
        for k in range(16):
            if k % 4 == 0:
                A(f"s_add_u32 m0, s72, {1024*k}")
                if k: A("s_add_u32 s70, s70, 4096")
            A(f"buffer_load_dwordx4 v4, s[8:11], s70 offen offset:{1024*(k%4)} sc1 lds")
    A("buffer_load_dword v23, v22, s[8:11], s71 offen sc1")
    A("s_waitcnt vmcnt(9)\ns_barrier"); trace(); A("s_waitcnt vmcnt(0)")
    A("v_readfirstlane_b32 s3, v23\ns_cmp_eq_u32 s3, 1\ns_cbranch_scc0 L3_llate")
    obuf_dma()
    A("s_barrier\ns_branch L3_ldone")
    A("L3_llate:")
    A("s_barrier\ns_mov_b32 s5, 0")
    A("L3_poll:")
    A("buffer_load_dword v23, v22, s[8:11], s71 offen sc1\ns_waitcnt vmcnt(0)\nv_readfirstlane_b32 s3, v23\ns_cmp_eq_u32 s3, 1\ns_cbranch_scc1 L3_got\ns_sleep 1\ns_add_u32 s5, s5, 1\ns_cmp_lt_u32 s5, 0x40000\ns_cbranch_scc1 L3_poll")
    A("L3_got:")
    obuf_dma()
    A("L3_ldone:")
    trace()
    A("s_waitcnt vmcnt(0)"); trace(); A("s_barrier"); trace(); trace_dump()
    A("L3_end:\ns_endpgm")

A.raw(f"; @launch kernel=k1_g1_kernel grid=(256,1,1) block=(512,1,1) lds={G1_LDS}")
A.raw("; @launch kernel=k2_g2_kernel grid=(256,1,1) block=(512,1,1) lds=163840")
A.raw('.amdgcn_target "amdgcn-amd-amdhsa--gfx950"')
A.raw('.text')
assert P['pz'] <= 6
g1(); g2()
A.raw('.section .rodata,"a"')
kdesc('k1_g1_kernel', 256, 100)
kdesc('k2_g2_kernel', 256, 100)
sys.stdout.write(A.text())
```

```python
import sys, math, struct
from asmlib import Asm

P = dict(stamp=0, X=13, dbg=0, pf2=1, pf3=1, pfa=1, pfb=2, slp=6, npk=2, pz=6, tk1=1, tk2=1, pfc=1, st3=1, xfirst=0, wpre=4, tfix=10000)
for a in sys.argv[1:]:
    k, v = a.split('='); assert k in P, k; P[k] = int(v)
STAMP = P['stamp']; XO = P['X']
OSTF = ['', ' sc1', ' nt'][P['st3']]

def f2u(x): return struct.unpack('<I', struct.pack('<f', x))[0]
def fh(x): return '0x%08x' % f2u(x)

MB = 1 << 20
WS_XN = 0
WS_STATS = 4 * MB
WS_TBUF = 4 * MB + 65536
WS_FLAGS = 4 * MB + 196608
WS_CNT2 = 4 * MB + 262144
WS_ACT = 8 * MB
WS_OBUF = 32 * MB
WS_STAMP = 48 * MB
WS_SIZE = 64 * MB
LOG2E = 1.4426950408889634
KX, KLRE, KLIM, KBRE, KBIM, KCRE, KCIM, KLDT, KDSK, KWG, KWU, KWD, KOUT, KDBG, KWS = 32, 34, 36, 38, 40, 42, 44, 46, 48, 52, 54, 56, 58, 60, 62

A = Asm()

def kstart(name):
    A.raw(f'.globl {name}\n.p2align 8\n.type {name},@function\n{name}:')
    A.reset()

def kdesc(name, vgpr, sgpr):
    A.raw(f'''.p2align 6
.amdhsa_kernel {name}
  .amdhsa_next_free_vgpr {vgpr}
  .amdhsa_next_free_sgpr {sgpr}
  .amdhsa_accum_offset {(vgpr+3)//4*4}
  .amdhsa_group_segment_fixed_size 0
  .amdhsa_kernarg_size 128
  .amdhsa_user_sgpr_count 2
  .amdhsa_user_sgpr_kernarg_segment_ptr 1
  .amdhsa_system_sgpr_workgroup_id_x 1
.end_amdhsa_kernel''')

def srd(d, b, size):
    A(f"s_mov_b32 s{d}, s{b}\ns_and_b32 s{d+1}, s{b+1}, 0xffff\ns_mov_b32 s{d+2}, {size}\ns_mov_b32 s{d+3}, 0x20000")

def stamp(slot, kid, tmpv, cond=None, wave=0, dyn=None):
    if not STAMP: return
    sp = 88
    lab = f"Lst_{kid}_{slot}_{len(A.lines)}"
    if cond is not None: A(f"s_cmp_lg_u32 s{cond}, {wave}\ns_cbranch_scc1 {lab}")
    A(f"s_memrealtime s[{sp}:{sp+1}]\ns_memtime s[{sp+2}:{sp+3}]\ns_waitcnt lgkmcnt(0)")
    A(f"s_lshl_b32 s{sp+4}, s2, 7\ns_add_u32 s{sp+4}, s{sp+4}, {WS_STAMP + kid*256*128 + slot*16}")
    if dyn is not None: A(f"s_lshl_b32 s{sp+5}, s{dyn}, 4\ns_sub_u32 s{sp+4}, s{sp+4}, s{sp+5}")
    A(f"v_mov_b32 v{tmpv}, s{sp}\nv_mov_b32 v{tmpv+1}, s{sp+1}\nv_mov_b32 v{tmpv+2}, s{sp+2}\nv_mov_b32 v{tmpv+3}, s{sp+3}")
    A(f"s_mov_b64 exec, 1\nbuffer_store_dwordx4 v[{tmpv}:{tmpv+3}], off, s[8:11], s{sp+4}\ns_mov_b64 exec, -1")
    A(f"{lab}:")

class LQ:
    def __init__(self): self.n = 0; self.tag = {}; self.done = 0
    def issue(self, tag, text):
        A(text); self.n += 1; self.tag[tag] = self.n
    def wait(self, *tags):
        need = max(self.tag[t] for t in tags)
        if need <= self.done: return
        c = self.n - need
        assert c <= 15
        A(f"s_waitcnt lgkmcnt({c})"); self.done = need
    def all_done(self): self.done = self.n
    def forget(self): self.done = 0

NPK = [0]
def pk(op, d, *srcs, sel=None, neg=None):
    n = len(srcs); sel = sel or 'n' * n; neg = neg or [0] * n
    t = [f"v[{x}:{x+1}]" if isinstance(x, int) else x for x in srcs]
    for x in srcs:
        if isinstance(x, int): assert x % 2 == 0, x
    assert d % 2 == 0
    lo = [{'n': 0, 'l': 0, 'h': 1, 'x': 1}[c] for c in sel]; hi = [{'n': 1, 'l': 0, 'h': 1, 'x': 0}[c] for c in sel]
    nl = [1 if c in (1, 'l') else 0 for c in neg]; nh = [1 if c in (1, 'h') else 0 for c in neg]
    if NPK[0]:
        out = []
        halves = [(0, lo, nl), (1, hi, nh)]
        srcs_hi = [x + hi[k] for k, x in enumerate(srcs) if isinstance(x, int)]
        srcs_lo = [x + lo[k] for k, x in enumerate(srcs) if isinstance(x, int)]
        if d in srcs_hi:
            assert d + 1 not in srcs_lo, "alias"
            halves = halves[::-1]
        for hf, sl, ng in halves:
            ops = [(('-' if ng[k] else '') + f"v{x+sl[k]}") if isinstance(x, int) else x for k, x in enumerate(srcs)]
            dd = f"v{d+hf}"
            if op == 'fma' and ops[2] == dd and not any(ng): out.append(f"v_fmac_f32 {dd}, {ops[0]}, {ops[1]}")
            elif op == 'fma': out.append(f"v_fma_f32 {dd}, " + ', '.join(ops))
            elif op == 'add' and ng[1] and not ng[0]: out.append(f"v_sub_f32 {dd}, {ops[0]}, {ops[1][1:]}")
            else:
                if not ops[1].startswith('v'): ops = ops[::-1]
                assert not any(ng)
                out.append(f"v_{op}_f32 {dd}, " + ', '.join(ops))
        return '\n'.join(out)
    f = lambda v: '[' + ','.join(map(str, v)) + ']'
    m = ''
    if any(lo): m += f" op_sel:{f(lo)}"
    if not all(hi): m += f" op_sel_hi:{f(hi)}"
    if any(nl): m += f" neg_lo:{f(nl)}"
    if any(nh): m += f" neg_hi:{f(nh)}"
    return f"v_pk_{op}_f32 v[{d}:{d+1}], " + ', '.join(t) + m

def cma2(args):
    l = [[pk('fma', t, a, b, c, sel='lnn'), pk('fma', d, a, b, t, sel='hxn', neg=['l', 0, 0])] for d, a, b, c, t in args]
    for k in range(2):
        for x in l: A(x[k])

def ticket_issue(srdn, shift, base):
    A("s_getreg_b32 s3, hwreg(HW_REG_XCC_ID)\ns_and_b32 s3, s3, 7")
    A(f"s_lshl_b32 s5, s3, {shift}\ns_add_u32 s5, s5, {base}\nv_mov_b32 v20, 1\ns_mov_b64 exec, 1")
    A(f"buffer_atomic_add v20, off, s[{srdn}:{srdn+3}], s5 sc0 sc1\ns_mov_b64 exec, -1")
def ticket_finish(srdn, shift, base, young, lab, ldsaddr):
    A(f"s_mov_b32 s4, 0\ns_waitcnt vmcnt({young})\n{lab}_chk:")
    A(f"v_readfirstlane_b32 s29, v20\ns_cmp_lt_u32 s29, 32\ns_cbranch_scc1 {lab}_ok")
    A(f"s_add_u32 s4, s4, 1\ns_cmp_ge_u32 s4, 8\ns_cbranch_scc1 {lab}_ok")
    A(f"s_add_u32 s3, s3, 1\ns_and_b32 s3, s3, 7\ns_lshl_b32 s5, s3, {shift}\ns_add_u32 s5, s5, {base}\nv_mov_b32 v20, 1\ns_mov_b64 exec, 1")
    A(f"buffer_atomic_add v20, off, s[{srdn}:{srdn+3}], s5 sc0 sc1\ns_mov_b64 exec, -1\ns_waitcnt vmcnt(0)\ns_branch {lab}_chk")
    A(f"{lab}_ok:\ns_lshl_b32 s29, s29, 3\ns_add_u32 s29, s29, s3\ns_and_b32 s29, s29, 255")
    A(f"v_mov_b32 v20, s29\nv_mov_b32 v21, {ldsaddr}\nds_write_b32 v21, v20\ns_waitcnt lgkmcnt(0)")
def ticket_read(ldsaddr, bar=True):
    if bar: A("s_barrier")
    A(f"v_mov_b32 v21, {ldsaddr}\nds_read_b32 v20, v21\ns_waitcnt lgkmcnt(0)\nv_readfirstlane_b32 s6, v20\ns_and_b32 s6, s6, 255")

SLOT1 = 34816
OFF_WG, OFF_WU, OFF_B = 16384, 23552, 30720
G1_SCR = 4 * SLOT1
G1_LDS = G1_SCR + 1024 + 512 + 64
TKL = G1_SCR + 1536
ACC = 96; AFR = 16; BFR = 48
def acc(b, i): return ACC + (b * 4 + i) * 4
PB = 224
def pr(b, k): return PB + 16 * b + k

def gelu_pair(bg, bu, T):
    K = T + 20
    A("s_lshr_b32 s66, s64, 2\ns_lshl_b32 s66, s66, 18\ns_and_b32 s3, s64, 3\ns_lshl_b32 s3, s3, 12\ns_add_u32 s66, s66, s3\ns_add_u32 s66, s66, s65\ns_add_u32 s64, s64, 1")
    for h in range(2):
        prs = [(acc(bg, 2*h + ii) + 2*k, acc(bu, 2*h + ii) + 2*k) for ii in range(2) for k in range(2)]
        for n, (g, u) in enumerate(prs): A(pk('mul', T+2*n, g, g))
        for n, (g, u) in enumerate(prs): A(pk('fma', T+2*n, T+2*n, K, K, sel='nlh'))
        for n, (g, u) in enumerate(prs): A(pk('mul', T+2*n, T+2*n, g))
        for n, (g, u) in enumerate(prs):
            A(f"v_exp_f32 v{T+2*n}, v{T+2*n}\nv_exp_f32 v{T+2*n+1}, v{T+2*n+1}")
            A(pk('mul', T+8+2*n, g, u))
        for n in range(4): A(pk('add', T+2*n, T+2*n, '1.0', sel='nl'))
        for e in range(8): A(f"v_rcp_f32 v{T+e}, v{T+e}")
        for n in range(4): A(pk('mul', T+8+2*n, T+8+2*n, T+2*n))
        o = acc(bg, 2 * h)
        for n in range(4): A(f"v_cvt_pk_bf16_f32 v{o+n}, v{T+8+2*n}, v{T+9+2*n}")
        A(f"buffer_store_dwordx4 v[{o}:{o+3}], v{10+h}, s[8:11], s66 offen sc1")

def g1_loop(kind):
    NBLK = 10 if kind == 0 else 8
    NBUF = 5 if kind == 0 else 8
    BAR = NBLK - 3
    ND = 4 if kind == 0 else 5
    q = LQ()
    def bfr(b): return BFR + (b % NBUF) * 4
    def rd_A(slot, par):
        return [(('A', par, i), f"ds_read_b128 v[{AFR+par*16+i*4}:{AFR+par*16+i*4+3}], v{4+(slot>>1)} offset:{(slot&1)*SLOT1 + i*1024}") for i in range(4)]
    def rd_B(slot, b):
        f = bfr(b); so = (slot & 1) * SLOT1
        if kind == 0 or b < 4:
            j = (b >> 1) + (0 if kind == 0 else 5)
            off = so + (b & 1) * 7168 + 32 * j
            return [(('B', b, 0), f"ds_read_b64_tr_b16 v[{f}:{f+1}], v{6+(slot>>1)} offset:{off}"),
                    (('B', b), f"ds_read_b64_tr_b16 v[{f+2}:{f+3}], v{6+(slot>>1)} offset:{off+1792}")]
        idx = ((b - 4) & 1) * 2 + ((b - 4) >> 1)
        return [(('B', b), f"ds_read_b128 v[{f}:{f+3}], v{8+(slot>>1)} offset:{so + idx*1024}")]
    def dma(slot, part='ab'):
        base = slot * SLOT1
        if kind == 0:
            return [[f"s_add_u32 m0, s22, {base + OFF_WG}", "buffer_load_dwordx4 v2, s[12:15], s20 offen lds"],
                    ["s_mov_b64 exec, s[30:31]", "buffer_load_dwordx4 v3, s[12:15], s20 offen offset:1024 lds", "s_mov_b64 exec, -1"],
                    [f"s_add_u32 m0, s22, {base + OFF_WU}", "buffer_load_dwordx4 v2, s[16:19], s20 offen lds"],
                    ["s_mov_b64 exec, s[30:31]", "buffer_load_dwordx4 v3, s[16:19], s20 offen offset:1024 lds", "s_mov_b64 exec, -1", "s_add_u32 s20, s20, 229376"]]
        la = [[f"s_add_u32 m0, s22, {base}", "buffer_load_dwordx4 v2, s[8:11], s20 offen sc1 lds"],
              ["buffer_load_dwordx4 v2, s[8:11], s20 offen offset:1024 sc1 lds"],
              ["buffer_load_dwordx4 v2, s[8:11], s20 offen offset:2048 sc1 lds"],
              ["buffer_load_dwordx4 v2, s[8:11], s20 offen offset:3072 sc1 lds", "s_add_u32 s20, s20, 131072"]]
        lb = [[f"s_add_u32 m0, s23, {base + OFF_B}", "buffer_load_dwordx4 v3, s[12:15], s21 offen lds", "s_add_u32 s21, s21, 64"]]
        return (la if 'a' in part else []) + (lb if 'b' in part else [])
    def first_reads():
        for t, x in rd_A(0, 0) + rd_B(0, 0) + rd_B(0, 1) + rd_B(0, 2) + rd_B(0, 3): q.issue(t, x)
    def stage(slot, do_dma, vm, last=False, bar=True, fill=None, nfill=0, post_bar=None, early=None, dslot=None, czero=False, epart='ab', dpart='ab'):
        par = slot & 1
        pend = dma(early, epart) if early is not None else []
        if dslot is None: dslot = slot
        for b in range(NBLK):
            rds = []
            if b + 4 < NBLK: rds = rd_B(slot, b + 4)
            if b == BAR and not last:
                if bar:
                    A(f"s_waitcnt vmcnt({vm}) lgkmcnt(0)"); q.all_done()
                    A("s_barrier")
                    if post_bar: A(post_bar)
                ns = (slot + 1) & 3
                rds = rd_A(ns, par ^ 1) + rd_B(ns, 0) + rd_B(ns, 1)
                assert not pend
                if do_dma: pend = dma(dslot, dpart)
            elif b > BAR and not last:
                rds = rd_B((slot + 1) & 3, b - BAR + 1)
            for i in range(4):
                if b == 0: q.wait(('A', par, i), ('B', b))
                else: q.wait(('B', b))
                ii = 3 - i if b & 1 else i
                a = acc(b, ii); fa = AFR + par * 16 + ii * 4; fb = bfr(b)
                A(f"v_mfma_f32_16x16x32_bf16 v[{a}:{a+3}], v[{fa}:{fa+3}], v[{fb}:{fb+3}], " + ("0" if czero else f"v[{a}:{a+3}]"))
                for _ in range((len(rds) + (3 - i)) // (4 - i)):
                    t, x = rds.pop(0); q.issue(t, x)
                for _ in range(nfill):
                    if fill: A(fill.pop(0))
                if pend and ((b > BAR and (i & 1)) or (b < BAR and i == 3)):
                    for x in pend.pop(0): A(x)
            if b == NBLK - 1:
                while pend:
                    for x in pend.pop(0): A(x)
    return first_reads, stage, q, ND, dma

def ssm_params():
    L = []
    def E(t): L.extend(t.split('\n'))
    for b in range(2):
        lr, li, ld = 80 + 3*b, 81 + 3*b, 82 + 3*b
        LR, LI = pr(b,0), pr(b,2)
        E(f"v_lshlrev_b32 v{lr}, 16, v{lr}\nv_lshlrev_b32 v{li}, 16, v{li}\nv_lshlrev_b32 v{ld}, 16, v{ld}")
        E(f"v_mul_f32 v{ld}, {fh(LOG2E)}, v{ld}\nv_exp_f32 v{ld}, v{ld}\nv_mul_f32 v14, v{lr}, v{lr}\nv_cvt_pk_bf16_f32 v{ld}, v{ld}, v{ld}\nv_and_b32 v{ld}, 0xffff0000, v{ld}")
        E(f"v_mul_f32 v10, v{ld}, v{lr}\nv_mul_f32 v10, {fh(LOG2E)}, v10\nv_exp_f32 v10, v10")
        E(f"v_mul_f32 v11, v{ld}, v{li}\nv_mul_f32 v11, {fh(1/(2*math.pi))}, v11\nv_rndne_f32 v12, v11\nv_sub_f32 v11, v11, v12")
        E(f"v_cos_f32 v12, v11\nv_sin_f32 v13, v11\nv_fmac_f32 v14, v{li}, v{li}\nv_rcp_f32 v11, v14")
        E(f"v_mul_f32 v{LR}, v10, v12\nv_mul_f32 v{LI}, v10, v13")
        E(f"v_add_f32 v10, -1.0, v{LR}\nv_add_f32 v11, v11, v11")
        E(f"v_mul_f32 v12, v10, v{lr}\nv_fmac_f32 v12, v{LI}, v{li}\nv_mul_f32 v{pr(b,12)}, v12, v11")
        E(f"v_mul_f32 v12, v{LI}, v{lr}\nv_fma_f32 v12, -v10, v{li}, v12\nv_mul_f32 v{pr(b,13)}, v12, v11")
        cur = (LR, LI)
        dsts = {2: (LR+1, LI+1), 16: (pr(b,4), pr(b,5)), 32: (pr(b,6), pr(b,7)), 64: (pr(b,8), pr(b,9)), 256: (pr(b,10), pr(b,11))}
        e = 1; tog = 0
        while e < 256:
            e *= 2
            d = dsts.get(e, (10 + 2*tog, 11 + 2*tog)); tog ^= 1
            E(f"v_mul_f32 v14, v{cur[1]}, v{cur[1]}\nv_mul_f32 v15, v{cur[0]}, v{cur[1]}")
            E(f"v_fma_f32 v{d[0]}, v{cur[0]}, v{cur[0]}, -v14\nv_add_f32 v{d[1]}, v15, v15")
            cur = d
        E("v_and_b32 v14, 32, v1\nv_cmp_ne_u32 vcc, 0, v14\nv_mov_b32 v14, 1.0\nv_mov_b32 v15, 0")
        E(f"v_cndmask_b32 v10, v14, v{pr(b,6)}, vcc\nv_cndmask_b32 v11, v15, v{pr(b,7)}, vcc")
        E("v_and_b32 v14, 16, v1\nv_cmp_ne_u32 vcc, 0, v14")
        E(f"v_mul_f32 v12, v10, v{pr(b,4)}\nv_fma_f32 v12, -v11, v{pr(b,5)}, v12\nv_mul_f32 v13, v10, v{pr(b,5)}\nv_fmac_f32 v13, v11, v{pr(b,4)}")
        E(f"v_cndmask_b32 v{pr(b,14)}, v10, v12, vcc\nv_cndmask_b32 v{pr(b,15)}, v11, v13, vcc")
    return L

def ln_phase(kind):
    X = 116; R = 132
    for d in range(8): A(f"v_lshlrev_b32 v{X+2*d}, 16, v{108+d}\nv_and_b32 v{X+1+2*d}, 0xffff0000, v{108+d}")
    A(pk('add', R, X, X+2)); A(pk('add', R+2, X+4, X+6))
    A(pk('add', R, R, X+8)); A(pk('add', R+2, R+2, X+10)); A(pk('add', R, R, X+12)); A(pk('add', R+2, R+2, X+14))
    A(pk('add', R, R, R+2)); A(f"v_add_f32 v{R}, v{R}, v{R+1}")
    def red8(v):
        A(f"v_add_f32_dpp v{v}, v{v}, v{v} quad_perm:[1,0,3,2] row_mask:0xf bank_mask:0xf")
        A(f"v_add_f32_dpp v{v}, v{v}, v{v} quad_perm:[2,3,0,1] row_mask:0xf bank_mask:0xf")
        A(f"v_add_f32_dpp v{v}, v{v}, v{v} row_half_mirror row_mask:0xf bank_mask:0xf")
    red8(R)
    A(f"v_mul_f32 v{R+4}, {fh(1/128)}, v{R}")
    for d in range(8): A(pk('add', R+8+2*d, X+2*d, R+4, sel='nl', neg=[0, 1]))
    A(pk('mul', R, R+8, R+8)); A(pk('mul', R+2, R+10, R+10))
    for d in range(2, 8): A(pk('fma', R+2*(d&1), R+8+2*d, R+8+2*d, R+2*(d&1)))
    A(pk('add', R, R, R+2)); A(f"v_add_f32 v{R+5}, v{R}, v{R+1}")
    red8(R+5)
    A(f"ds_write_b64 v107, v[{R+4}:{R+5}]\ns_waitcnt lgkmcnt(0)\ns_barrier")
    for k in range(4): A(f"ds_read_b128 v[{R+8+4*k}:{R+11+4*k}], v106 offset:{16*k}")
    A("s_waitcnt lgkmcnt(0)")
    Q = R + 8
    A(pk('add', R, Q, Q+2)); A(pk('add', R+2, Q+4, Q+6)); A(pk('add', R, R, Q+8)); A(pk('add', R+2, R+2, Q+10)); A(pk('add', R, R, Q+12)); A(pk('add', R+2, R+2, Q+14))
    A(pk('add', R, R, R+2))
    A(f"v_mul_f32 v{R}, {fh(0.125)}, v{R}\nv_mul_f32 v{R+1}, {fh(1/1024)}, v{R+1}")
    for k in range(8): A(f"v_sub_f32 v{Q+2*k}, v{Q+2*k}, v{R}")
    A(f"v_mul_f32 v{R+2}, v{Q}, v{Q}\nv_mul_f32 v{R+3}, v{Q+2}, v{Q+2}")
    for k in range(2, 8): A(f"v_fmac_f32 v{R+2+(k&1)}, v{Q+2*k}, v{Q+2*k}")
    A(f"v_add_f32 v{R+2}, v{R+2}, v{R+3}\nv_fmac_f32 v{R+1}, {fh(0.125)}, v{R+2}")
    A(f"v_cvt_pk_bf16_f32 v{R+2}, v{R}, v{R+1}\nv_lshlrev_b32 v{R}, 16, v{R+2}\nv_and_b32 v{R+1}, 0xffff0000, v{R+2}")
    A(f"v_add_f32 v{R+1}, {fh(1e-5)}, v{R+1}\nv_cvt_pk_bf16_f32 v{R+1}, v{R+1}, v{R+1}\nv_and_b32 v{R+1}, 0xffff0000, v{R+1}")
    A(f"v_sqrt_f32 v{R+1}, v{R+1}")
    for d in range(8): A(pk('add', X+2*d, X+2*d, R, sel='nl', neg=[0, 1]))
    A(f"v_cvt_pk_bf16_f32 v{R+1}, v{R+1}, v{R+1}\nv_and_b32 v{R+1}, 0xffff0000, v{R+1}\nv_rcp_f32 v{R+1}, v{R+1}")
    for d in range(8): A(f"v_cvt_pk_bf16_f32 v{108+d}, v{X+2*d}, v{X+2*d+1}")
    for d in range(8): A(f"v_lshlrev_b32 v{X+2*d}, 16, v{108+d}\nv_and_b32 v{X+1+2*d}, 0xffff0000, v{108+d}")
    for d in range(8): A(pk('mul', X+2*d, X+2*d, R, sel='nh'))
    for d in range(8): A(f"v_cvt_pk_bf16_f32 v{108+d}, v{X+2*d}, v{X+2*d+1}")
    A(f"s_mov_b32 s3, {WS_XN}\ns_mov_b32 s4, {WS_XN + 262144}")
    A("buffer_store_dwordx4 v[108:111], v102, s[8:11], s3 offen sc1\nbuffer_store_dwordx4 v[112:115], v102, s[8:11], s4 offen sc1")
    if kind == 0:
        A("s_cmp_lg_u32 s26, 3\ns_cbranch_scc1 L2_lni2")
        A(f"s_lshl_b32 s3, s2, 2\ns_add_u32 s3, s3, {WS_CNT2}\nv_mov_b32 v107, 0\ns_mov_b64 exec, 1\nbuffer_store_dword v107, off, s[8:11], s3\ns_mov_b64 exec, -1")
        A("L2_lni2:\ns_cmp_lg_u32 s26, 2\ns_cbranch_scc1 L2_lni3")
        A(f"v_lshlrev_b32 v100, 3, v100\ns_mov_b32 s3, {WS_STATS}\ns_mov_b32 exec_lo, 0x01010101\ns_mov_b32 exec_hi, 0x01010101")
        A(f"buffer_store_dwordx2 v[{R}:{R+1}], v100, s[8:11], s3 offen\ns_mov_b64 exec, -1")
        A("L2_lni3:")

def g1():
    kstart('k1_g1_kernel')
    A("s_cmp_ge_u32 s2, 256\ns_cbranch_scc1 L2_end")
    A("s_load_dwordx16 s[32:47], s[0:1], 0\ns_load_dwordx16 s[48:63], s[0:1], 64")
    A("v_and_b32 v1, 63, v0\nv_lshrrev_b32 v10, 6, v0\nv_readfirstlane_b32 s25, v10")
    A("s_lshr_b32 s7, s2, 5\ns_mov_b32 s30, -1\ns_mov_b32 s31, 0xffff")
    A("v_lshrrev_b32 v103, 3, v1\ns_and_b32 s3, s2, 1\ns_lshl_b32 s3, s3, 3\nv_add_u32 v103, s3, v103\nv_and_b32 v104, 7, v1")
    A("s_bfe_u32 s4, s2, 0x20001\ns_bfe_u32 s5, s2, 0x20003\ns_lshl_b32 s3, s7, 8\ns_lshl_b32 s29, s5, 6\ns_add_u32 s3, s3, s29\ns_lshl_b32 s29, s4, 2\ns_add_u32 s3, s3, s29")
    A("v_lshrrev_b32 v100, 2, v103\nv_lshlrev_b32 v100, 4, v100\nv_and_b32 v101, 3, v103\nv_add3_u32 v100, v100, v101, s3")
    A("s_lshl_b32 s3, s25, 8\nv_lshlrev_b32 v101, 11, v100\nv_lshl_add_u32 v101, v104, 4, v101\nv_add_u32 v101, s3, v101")
    A("s_lshl_b32 s20, s7, 14\ns_lshl_b32 s5, s5, 12\ns_add_u32 s20, s20, s5\ns_lshl_b32 s4, s4, 10\ns_add_u32 s20, s20, s4\ns_lshl_b32 s4, s25, 19\ns_add_u32 s20, s20, s4")
    A("s_and_b32 s26, s25, 3")
    A("s_waitcnt lgkmcnt(0)")
    srd(80, KX, 4 * MB); srd(96, KDBG, 256)
    XL = "buffer_load_dwordx4 v[108:111], v101, s[80:83], 0 offen\nbuffer_load_dwordx4 v[112:115], v101, s[80:83], 0 offen offset:128"
    A(XL)
    srd(8, KWS, WS_SIZE)
    stamp(0, 1, 16, 25, 0)
    A("v_lshrrev_b32 v102, 2, v104\nv_lshlrev_b32 v102, 17, v102\nv_and_b32 v105, 3, v104\nv_lshl_add_u32 v102, v105, 8, v102\nv_lshl_add_u32 v102, v103, 4, v102\nv_add_u32 v102, s20, v102")
    A(f"v_lshrrev_b32 v106, 3, v1\nv_lshlrev_b32 v106, 6, v106\nv_add_u32 v106, {G1_SCR+1024}, v106\ns_lshl_b32 s3, s25, 3\nv_add_u32 v107, s3, v106")
    A(f"s_lshl_b32 s3, s26, 12\nv_lshlrev_b32 v4, 4, v1\nv_add_u32 v4, s3, v4\nv_add_u32 v5, {2*SLOT1}, v4")
    A("v_lshrrev_b32 v10, 4, v1\nv_bfe_u32 v11, v1, 2, 2\nv_and_b32 v12, 3, v1")
    A("v_and_b32 v13, 1, v10\nv_lshl_or_b32 v13, v13, 2, v11\nv_lshrrev_b32 v14, 1, v10\nv_lshl_or_b32 v13, v14, 4, v13")
    A(f"v_mul_u32_u24 v13, 224, v13\nv_lshl_add_u32 v13, v12, 3, v13\nv_add_u32 v6, {OFF_WG}, v13\nv_add_u32 v7, {2*SLOT1}, v6")
    A("v_and_b32 v13, 15, v1\nv_lshrrev_b32 v14, 2, v13\nv_sub_u32 v14, 0, v14\nv_and_b32 v14, 3, v14\nv_xor_b32 v14, v14, v10")
    A(f"v_lshlrev_b32 v13, 6, v13\nv_lshl_add_u32 v13, v14, 4, v13\nv_add_u32 v8, {OFF_B}, v13\nv_add_u32 v9, {2*SLOT1}, v8")
    A("v_min_u32 v94, 27, v1\nv_lshlrev_b32 v94, 7, v94\nv_and_b32 v95, 15, v1\nv_lshlrev_b32 v95, 7, v95")
    A("s_cmp_ge_u32 s25, 4\ns_cbranch_scc1 L2_kind1")
    g1_body(0)
    A("s_branch L2_end")
    A("L2_kind1:")
    g1_body(1)
    A("L2_end:\ns_endpgm")

def g1_body(kind):
    first_reads, stage, q, ND, dma = g1_loop(kind)
    def E(groups):
        for g in groups:
            for x in g: A(x)
    def touch(): A("buffer_load_dword v91, v90, s[84:87], s94 offen\ns_add_u32 s94, s94, s95")
    PF3 = P['pf3'] and kind == 0
    def pf3_off(idr, chunk):
        A(f"s_and_b32 s4, s{idr}, 7\ns_lshr_b32 s5, s{idr}, 3\ns_mul_i32 s94, s4, 896\ns_mul_i32 s3, s5, 28672\ns_add_u32 s94, s94, s3")
        A("s_lshl_b32 s4, s4, 18\ns_lshl_b32 s5, s5, 13\ns_add_u32 s4, s4, s5\ns_cmp_ge_u32 s26, 2\ns_cselect_b32 s94, s4, s94")
        if chunk: A(f"s_mul_i32 s3, s95, {chunk}\ns_add_u32 s94, s94, s3")
    if kind == 0:
        A(f"s_cmp_eq_u32 s26, 1\ns_cselect_b32 s4, s{KWU}, s{KWG}\ns_cselect_b32 s5, s{KWU+1}, s{KWG+1}")
        A(f"s_cmp_eq_u32 s26, 2\ns_cselect_b32 s4, s{KBRE}, s4\ns_cselect_b32 s5, s{KBRE+1}, s5")
        A(f"s_cmp_eq_u32 s26, 3\ns_cselect_b32 s4, s{KBIM}, s4\ns_cselect_b32 s5, s{KBIM+1}, s5")
        srd(84, 4, 1024 * 7168)
        A(f"s_mov_b32 s95, 917504\ns_cmp_ge_u32 s26, 2\ns_cselect_b32 s86, {2*MB}, s86\ns_cselect_b32 s95, 256, s95")
        A("v_min_u32 v10, 27, v1\nv_mul_u32_u24 v11, 9363, v10\nv_lshrrev_b32 v11, 16, v11\nv_mul_u32_u24 v12, 7, v11\nv_sub_u32 v12, v10, v12")
        A("v_mul_u32_u24 v11, 7168, v11\nv_lshl_add_u32 v90, v12, 7, v11")
        A("s_cmp_ge_u32 s26, 2\ns_cbranch_scc0 L2_pf3a")
        A("v_and_b32 v10, 1, v1\nv_bfe_u32 v11, v1, 1, 2\nv_lshlrev_b32 v11, 11, v11\nv_lshl_add_u32 v90, v10, 7, v11\nL2_pf3a:")
        pf3_off(2, 0)
        srd(12, KWG, 1024 * 7168); srd(16, KWU, 1024 * 7168)
        A("s_mov_b32 s3, 4682")
        A("s_and_b32 s4, s26, 1\ns_lshl_b32 s4, s4, 2\ns_lshr_b32 s5, s26, 1\ns_lshl_b32 s5, s5, 4\ns_or_b32 s4, s4, s5")
        for v, add in ((2, 0), (3, 64)):
            A(f"v_add_u32 v10, {add}, v1\nv_mul_u32_u24 v11, s3, v10\nv_lshrrev_b32 v11, 16, v11")
            A("v_mul_u32_u24 v12, 14, v11\nv_sub_u32 v12, v10, v12")
            A("v_and_b32 v13, 3, v11\nv_lshrrev_b32 v11, 2, v11\nv_lshl_or_b32 v13, v11, 3, v13")
            A(f"v_or_b32 v13, s4, v13\nv_mul_u32_u24 v13, 7168, v13\nv_lshl_add_u32 v{v}, v12, 4, v13")
        A("v_subrev_u32 v3, 1024, v3\ns_mul_i32 s22, s26, 1792")
        A("s_waitcnt vmcnt(0)")
        if PF3:
            for _ in range(P['pfa']): touch()
    else:
        A("v_lshlrev_b32 v10, 2, v1\ns_cmp_eq_u32 s26, 1\ns_cbranch_scc1 L2_in1\ns_cmp_eq_u32 s26, 2\ns_cbranch_scc1 L2_in2\ns_cmp_eq_u32 s26, 3\ns_cbranch_scc1 L2_in3")
        A(f"s_lshl_b32 s3, s2, 8\ns_add_u32 s3, s3, {WS_TBUF}\nv_mov_b32 v11, -1\nbuffer_store_dword v11, v10, s[8:11], s3 offen sc1\ns_branch L2_in4")
        A(f"L2_in1:\ns_lshl_b32 s3, s2, 5\ns_add_u32 s3, s3, {WS_FLAGS}\nv_mov_b32 v11, 0\ns_mov_b64 exec, 0xff\nbuffer_store_dword v11, v10, s[8:11], s3 offen\ns_mov_b64 exec, -1\ns_branch L2_in4")
        A("L2_in2:")
        A("s_getpc_b64 s[16:17]\nL2_pc:\ns_sub_u32 s16, s16, L2_pc-k1_g1_kernel\ns_subb_u32 s17, s17, 0")
        A("s_lshr_b32 s3, s2, 3\ns_lshl_b32 s3, s3, 4\nv_and_b32 v11, 15, v1\nv_add_u32 v11, s3, v11\nv_lshlrev_b32 v11, 7, v11\ns_mov_b32 s3, L3_end-k1_g1_kernel\nv_min_u32 v11, s3, v11")
        if not P['pfc']: A("v_mov_b32 v11, 0")
        A("global_load_dword v91, v11, s[16:17]\ns_branch L2_in4")
        A("L2_in3:")
        ticket_issue(96, 5, 16)
        A("s_mov_b32 s79, s3")
        A("L2_in4:")
        A(f"s_lshl_b32 s3, s26, 8\ns_add_u32 s3, s3, {G1_SCR}\nv_add_u32 v13, s3, v10\nv_mov_b32 v14, -1\nds_write_b32 v13, v14")
        A(f"s_cmp_ge_u32 s26, 2\ns_cselect_b32 s4, s{KBIM}, s{KBRE}\ns_cselect_b32 s5, s{KBIM+1}, s{KBRE+1}")
        srd(12, 4, 2 * MB)
        A("v_mov_b32 v2, v4")
        A("v_lshrrev_b32 v10, 2, v1\nv_lshrrev_b32 v11, 4, v1\nv_sub_u32 v11, 0, v11\nv_xor_b32 v11, v11, v1\nv_and_b32 v11, 3, v11")
        A("s_and_b32 s4, s26, 1\ns_lshl_b32 s4, s4, 4\nv_add_u32 v10, s4, v10\nv_lshlrev_b32 v10, 11, v10\nv_lshl_add_u32 v3, v11, 4, v10")
        A("s_lshl_b32 s22, s26, 12\ns_lshl_b32 s23, s26, 10")
        A("s_waitcnt vmcnt(1)")
    if P['dbg'] == 5: stamp(0, 3, 16, 25, 4)
    ln_phase(kind)
    srd(68, KCIM if kind else KCRE, 2 * MB); srd(72, KWD, 3584 * 2048)
    A("s_lshl_b32 s3, s2, 3\ns_add_u32 s3, s3, s25\ns_mul_i32 s76, s3, 3584\ns_lshl_b32 s3, s2, 2\ns_add_u32 s3, s3, s26\ns_lshl_b32 s77, s3, 11\ns_sub_u32 s78, 6, s26")
    if kind == 1:
        A("s_cmp_lg_u32 s26, 3\ns_cbranch_scc1 L2_notk\ns_mov_b32 s3, s79")
        ticket_finish(96, 5, 16, 0, "L2_tk", TKL)
        A("L2_notk:")
    if P['dbg'] == 5: stamp(1, 3, 16, 25, 4)
    A("s_waitcnt vmcnt(0) lgkmcnt(0)")
    if kind == 0:
        A("s_barrier\ns_cmp_lg_u32 s26, 0\ns_cbranch_scc1 L2_nosig\ns_lshl_b32 s29, s7, 5\nv_mov_b32 v10, 1\ns_mov_b64 exec, 1\nbuffer_atomic_add v10, off, s[96:99], s29 sc1\ns_mov_b64 exec, -1\nL2_nosig:")
        ticket_read(TKL, False)
    else:
        ticket_read(TKL)
    if not P['tk1']: A("s_mov_b32 s6, s2")
    if P['dbg'] == 5: stamp(2, 3, 16, 25, 4)
    A("s_and_b32 s27, s6, 7\ns_lshl_b32 s27, s27, 2\ns_bfe_u32 s3, s6, 0x20003\ns_add_u32 s27, s27, s3\ns_lshr_b32 s28, s6, 5")
    if kind == 0: A("s_mul_i32 s20, s27, 224")
    else: A(f"s_lshl_b32 s20, s28, 14\ns_add_u32 s20, s20, {WS_XN}\ns_lshl_b32 s21, s27, 16")
    def late_setup():
        A(f"s_lshl_b32 s67, s27, 11\ns_add_u32 s67, s67, {WS_TBUF}")
        A(f"s_lshl_b32 s65, s28, 1\ns_lshr_b32 s3, s26, 1\ns_add_u32 s65, s65, s3\ns_lshl_b32 s65, s65, 14\ns_and_b32 s3, s26, 1\ns_lshl_b32 s3, s3, 11\ns_add_u32 s65, s65, s3\ns_add_u32 s65, s65, {WS_ACT}")
        A(f"s_mul_i32 s64, s27, 7\ns_add_u32 s64, s64, {128 + (5 if kind else 0)}")
        if kind == 0: pf3_off(6, P['pfa'])
        else:
            A("v_and_b32 v10, 15, v1\ns_lshl_b32 s3, s27, 5\nv_add_u32 v10, s3, v10\nv_lshlrev_b32 v10, 1, v10")
            for k, kp in enumerate((KLRE, KLIM, KLDT)):
                srd(16, kp, 2048)
                for b in range(2): A(f"buffer_load_ushort v{80+3*b+k}, v10, s[16:19], 0 offen offset:{32*b}")
    pfb = P['pfb'] if PF3 else 0
    WP = P['wpre']
    if kind == 0:
        for sl in range(WP): E(dma(sl))
        late_setup()
        A("s_barrier")
        for sl in range(WP, 4): E(dma(sl))
        A("s_waitcnt vmcnt(12)\ns_barrier")
        for _ in range(pfb): touch()
    else:
        for sl in range(4): E(dma(sl, 'b'))
        A("s_cmp_lg_u32 s26, 0\ns_cbranch_scc1 L2_xgot\ns_lshl_b32 s29, s28, 5\ns_mov_b32 s5, 0\nL2_xpoll:")
        A(f"s_sleep {P['slp']}\nbuffer_load_dword v10, off, s[96:99], s29 sc1\ns_waitcnt vmcnt(0)\nv_readfirstlane_b32 s3, v10\ns_cmp_ge_u32 s3, 32\ns_cbranch_scc1 L2_xgot\ns_add_u32 s5, s5, 1\ns_cmp_lt_u32 s5, 0x40000\ns_cbranch_scc1 L2_xpoll")
        A("L2_xgot:\ns_barrier")
        if P['dbg'] == 5: stamp(3, 3, 16, 25, 4)
        E(dma(0, 'a')); E(dma(1, 'a'))
        late_setup()
        A("s_waitcnt vmcnt(10)\ns_barrier")
    npre = P['pfa'] + P['pfb']
    stamp(1, 1, 16, 25, 0)
    first_reads()
    A("s_mov_b32 s24, 7")
    if kind == 0:
        stage(0, True, 2*ND + pfb, czero=True)
        stage(1, True, 2*ND + pfb)
    else:
        stage(0, True, 10, early=2, dslot=3, czero=True, epart='a', dpart='a')
        stage(1, True, 9, early=0)
    A(f"s_branch L2_mid{kind}")
    A(f".p2align 4\nL2_loop{kind}:")
    if P['dbg'] == 2 and kind == 0: stamp(7, 3, 68, 26, 0, dyn=24)
    q.forget()
    if P['pf2']:
        A(f"s_cmp_lg_u32 s24, s78\ns_cbranch_scc1 L2_npf{kind}")
        A("buffer_load_dword v92, v94, s[72:75], s76 offen\nbuffer_load_dword v93, v95, s[68:71], s77 offen")
        A(f"L2_npf{kind}:")
    if PF3 and npre < 8:
        A(f"s_cmp_lt_u32 s24, {npre - 1}\ns_cbranch_scc1 L2_npf3")
        touch()
        A("L2_npf3:")
    for s in range(4):
        if s == 2:
            A(f"L2_mid{kind}:"); q.forget()
        stage(s, True, 2*ND)
    A(f"s_sub_u32 s24, s24, 1\ns_cmp_lg_u32 s24, 0\ns_cbranch_scc1 L2_loop{kind}")
    q.forget()
    fill = ssm_params() if kind == 1 else []
    c0 = -2 * 0.7978845608028654 * LOG2E
    T = 16
    fill += ("v_and_b32 v12, 3, v1\nv_bfe_u32 v13, v1, 3, 1\nv_lshl_or_b32 v12, v13, 2, v12\nv_bfe_u32 v13, v1, 2, 1\nv_lshl_or_b32 v12, v13, 3, v12\n"
             "v_and_b32 v13, 48, v1\nv_or_b32 v12, v12, v13\nv_lshlrev_b32 v10, 4, v12\nv_xor_b32 v11, 128, v10\nv_add_u32 v11, 1024, v11\n"
             f"v_and_b32 v12, 15, v1\nv_lshlrev_b32 v12, 4, v12\nv_add_u32 v13, {G1_SCR}, v12\ns_lshl_b32 s3, s26, 8\nv_add_u32 v14, s3, v13").split('\n')
    nf = 4 if kind == 1 else 1
    stage(0, False, 2*ND, fill=fill, nfill=nf)
    stage(1, False, 0, fill=fill, nfill=nf, post_bar=("s_setprio 2" if kind == 1 else None))
    for x in fill: A(x)
    if kind == 1: A("v_and_b32 v86, 7, v1\nv_lshlrev_b32 v86, 5, v86\nbuffer_load_dword v87, v86, s[96:99], 0 offen sc1")
    stage(2, False, 0, bar=False); stage(3, False, 0, last=True)
    stamp(2 + kind, 1, 16, 26, 0)
    A(f"v_mov_b32 v{T+20}, {fh(c0*0.044715)}\nv_mov_b32 v{T+21}, {fh(c0)}")
    if kind == 0:
        NPK[0] = P['npk'] & 1
        for j in range(5): gelu_pair(2*j, 2*j+1, T)
        NPK[0] = 0
        stamp(4, 1, 16, 26, 0)
        return
    def seq(b, part): return [acc(4 + 2*b + part, i) + r for i in range(4) for r in range(4)]
    cur = {b: (seq(b,0)[0], seq(b,1)[0]) for b in range(2)}
    NPK[0] = (P['npk'] >> 1) & 1
    for j in range(1, 8):
        nx = {b: (48 + 8*(j&1) + 4*b, 50 + 8*(j&1) + 4*b) for b in range(2)}
        for b in range(2):
            A(pk('fma', nx[b][0], pr(b,0), cur[b][0], seq(b,0)[2*j], sel='hnn')); A(pk('fma', nx[b][1], pr(b,0), cur[b][1], seq(b,1)[2*j], sel='hnn'))
        for b in range(2):
            A(pk('fma', nx[b][0], pr(b,2), cur[b][1], nx[b][0], sel='hnn', neg=[1,0,0])); A(pk('fma', nx[b][1], pr(b,2), cur[b][0], nx[b][1], sel='hnn'))
        cur = nx
    for b in range(2):
        er, ei = cur[b]
        A(f"v_fma_f32 v{48+2*b}, v{pr(b,0)}, v{er}, v{er+1}\nv_fma_f32 v{49+2*b}, v{pr(b,0)}, v{ei}, v{ei+1}")
    for b in range(2):
        er, ei = cur[b]
        A(f"v_fma_f32 v{48+2*b}, -v{pr(b,2)}, v{ei}, v{48+2*b}\nv_fmac_f32 v{49+2*b}, v{pr(b,2)}, v{er}")
    for k in range(4): A(f"v_mov_b32 v{52+k}, v{48+k}")
    for k in range(4): A(f"v_permlane16_swap_b32 v{48+k}, v{52+k}")
    cma2([(56+2*b, pr(b,4), 48+2*b, 52+2*b, 72+2*b) for b in range(2)])
    for k in range(4): A(f"v_mov_b32 v{60+k}, v{56+k}")
    for k in range(4): A(f"v_permlane32_swap_b32 v{56+k}, v{60+k}")
    cma2([(64+2*b, pr(b,6), 56+2*b, 60+2*b, 72+2*b) for b in range(2)])
    for k in range(4): A(f"v_min_u32 v{64+k}, -2, v{64+k}")
    A("s_mov_b64 exec, 0xffff\nds_write_b128 v14, v[64:67]\ns_mov_b64 exec, -1")
    A("v_and_b32 v15, 32, v1\nv_cmp_ne_u32 vcc, 0, v15\nv_mov_b32 v15, 0")
    for k in range(4): A(f"v_cndmask_b32 v{68+k}, v15, v{56+k}, vcc")
    cma2([(60+2*b, pr(b,4), 68+2*b, 48+2*b, 72+2*b) for b in range(2)])
    A("v_and_b32 v15, 16, v1\nv_cmp_ne_u32 vcc, 0, v15")
    for k in range(4): A(f"v_cndmask_b32 v{68+k}, v{68+k}, v{60+k}, vcc")
    NPK[0] = 0
    A("s_mov_b32 s5, 0\nL2_cchk:\ns_waitcnt vmcnt(0)\nv_cmp_gt_u32 vcc, 32, v87\ns_cbranch_vccz L2_lspin")
    A("buffer_load_dword v87, v86, s[96:99], 0 offen sc1\ns_add_u32 s5, s5, 1\ns_cmp_lt_u32 s5, 0x40000\ns_cbranch_scc1 L2_cchk")
    A("L2_lspin:")
    for w in range(4): A(f"ds_read_b128 v[{48+4*w}:{51+4*w}], v13 offset:{256*w}")
    A("s_waitcnt lgkmcnt(0)\nv_max_u32 v72, v48, v49")
    for k in range(2, 16, 2): A(f"v_max3_u32 v72, v72, v{48+k}, v{49+k}")
    A("v_cmp_eq_u32 vcc, -1, v72\ns_cbranch_vccnz L2_lspin")
    A("s_cmp_lg_u32 s26, 0\ns_cbranch_scc1 L2_nopub")
    for w in range(1, 4):
        cma2([(64+2*b, pr(b,8), (48 if w == 1 else 64)+2*b, 48+4*w+2*b, 72+2*b) for b in range(2)])
    for k in range(4): A(f"v_min_u32 v{64+k}, -2, v{64+k}")
    A("s_lshl_b32 s3, s28, 8\ns_add_u32 s3, s3, s67\ns_mov_b64 exec, 0xffff")
    A("buffer_store_dwordx4 v[64:67], v12, s[8:11], s3 offen sc1\ns_mov_b64 exec, -1")
    A("L2_nopub:")
    stamp(6, 1, 76, 26, 0)
    for b in range(2):
        cf = pr(b,12)
        for t in range(0, 16, 4):
            for u in range(2):
                re = seq(b,0)[t+2*u]
                A(pk('mul', 72+4*u, cf, re, sel='ln')); A(pk('mul', 74+4*u, cf, re, sel='hn'))
            for u in range(2):
                re, im = seq(b,0)[t+2*u], seq(b,1)[t+2*u]
                A(pk('fma', re, cf, im, 72+4*u, sel='hnn', neg=[1,0,0])); A(pk('fma', im, cf, im, 74+4*u, sel='lnn', neg=[1,0,1]))
        A(f"v_sub_f32 v72, 0, v{pr(b,2)}")
        for t in range(0, 16, 2):
            re, im = seq(b,0)[t], seq(b,1)[t]
            A(f"v_fmac_f32 v{re+1}, v{pr(b,0)}, v{re}\nv_fmac_f32 v{im+1}, v{pr(b,0)}, v{im}")
        for t in range(0, 16, 2):
            re, im = seq(b,0)[t], seq(b,1)[t]
            A(f"v_fmac_f32 v{re+1}, v{pr(b,2)}, v{im}\nv_fmac_f32 v{im+1}, v72, v{re}")
    gelu_pair(0, 1, T)
    gelu_pair(2, 3, T)
    stamp(7, 1, 76, 26, 0)
    for k in range(4): A(f"v_mov_b32 v{64+k}, 0")
    A("s_cmp_eq_u32 s28, 0\ns_cbranch_scc1 L2_nocarry")
    A("s_sub_u32 s4, s28, 1\ns_mov_b32 s5, 0")
    TB = 16
    A("L2_poll:")
    for j in range(7):
        A(f"s_min_u32 s3, s4, {j}\ns_lshl_b32 s3, s3, 8\ns_add_u32 s3, s3, s67")
        A(f"buffer_load_dwordx4 v[{TB+4*j}:{TB+4*j+3}], v12, s[8:11], s3 offen sc1")
    A(f"s_waitcnt vmcnt(0)\nv_max_u32 v72, v{TB}, v{TB+1}")
    for k in range(2, 28, 2): A(f"v_max3_u32 v72, v72, v{TB+k}, v{TB+k+1}")
    A("v_cmp_eq_u32 vcc, -1, v72\ns_cbranch_vccz L2_got\ns_sleep 1\ns_add_u32 s5, s5, 1\ns_cmp_lt_u32 s5, 0x40000\ns_cbranch_scc1 L2_poll")
    A("L2_got:")
    for k in range(4): A(f"v_mov_b32 v{64+k}, v{TB+k}")
    for j in range(1, 7):
        A(f"s_cmp_le_u32 s28, {j}\ns_cbranch_scc1 L2_nocarry")
        cma2([(64+2*b, pr(b,10), 64+2*b, TB+4*j+2*b, 72+2*b) for b in range(2)])
    A("L2_nocarry:")
    for w in range(3):
        A(f"s_cmp_le_u32 s26, {w}\ns_cbranch_scc1 L2_hw")
        cma2([(64+2*b, pr(b,8), 64+2*b, 48+4*w+2*b, 72+2*b) for b in range(2)])
    A("L2_hw:")
    cma2([(64+2*b, pr(b,14), 64+2*b, 68+2*b, 72+2*b) for b in range(2)])
    for b in range(2): A(f"v_mul_f32 v{72+2*b}, v{pr(b,12)}, v{64+2*b}\nv_mul_f32 v{73+2*b}, v{pr(b,13)}, v{64+2*b}")
    for b in range(2): A(f"v_fma_f32 v{49+4*b}, -v{pr(b,13)}, v{65+2*b}, v{72+2*b}\nv_fma_f32 v{51+4*b}, -v{pr(b,12)}, v{65+2*b}, -v{73+2*b}")
    A("s_lshr_b32 s66, s27, 1\ns_lshl_b32 s66, s66, 18\ns_and_b32 s3, s27, 1\ns_lshl_b32 s3, s3, 13\ns_add_u32 s66, s66, s3\ns_add_u32 s66, s66, s65")
    n = 0
    for t in range(0, 16, 2):
        pv = {b: ((48+4*b, 50+4*b) if t == 0 else (seq(b,0)[t-2], seq(b,1)[t-2])) for b in range(2)}
        for b in range(2):
            re, im = seq(b,0)[t], seq(b,1)[t]
            A(pk('fma', re, pr(b,0), pv[b][0], re, sel='nhn')); A(pk('fma', im, pr(b,0), pv[b][1], im, sel='nhn'))
        for b in range(2):
            re, im = seq(b,0)[t], seq(b,1)[t]
            A(pk('fma', re, pr(b,2), pv[b][1], re, sel='nhn')); A(pk('fma', im, pr(b,2), pv[b][0], im, sel='nhn', neg=[1,0,0]))
        if t in (6, 14):
            h = t >> 3
            for b in range(2):
                for part in range(2):
                    sq = seq(b, part)
                    o = 16 + 4 * n; n += 1
                    A(f"s_add_u32 s3, s66, {part*16*262144 + b*4096}")
                    for k in range(4): A(f"v_cvt_pk_bf16_f32 v{o+k}, v{sq[8*h+2*k]}, v{sq[8*h+2*k+1]}")
                    A(f"buffer_store_dwordx4 v[{o}:{o+3}], v{10+h}, s[8:11], s3 offen sc1")
    stamp(5, 1, 72, 26, 0)

def g2():
    NA = 32 + XO; NBS = 56 - XO
    FR = [32, 64]; ACCO = 96; ACCY = 160; XR = 224; XA = 28
    XL = 131072
    kstart('k2_g2_kernel')
    A("s_cmp_ge_u32 s2, 256\ns_cbranch_scc1 L3_end")
    A("s_load_dwordx16 s[32:47], s[0:1], 0\ns_load_dwordx16 s[48:63], s[0:1], 64")
    A("v_and_b32 v2, 63, v0\nv_lshrrev_b32 v1, 6, v0\nv_readfirstlane_b32 s26, v1")
    def decode():
        A("s_and_b32 s27, s6, 1\ns_bfe_u32 s28, s6, 0x20001\ns_lshr_b32 s29, s6, 3")
        A("s_and_b32 s30, s28, 1\ns_lshl_b32 s30, s30, 3\ns_and_b32 s31, s29, 7\ns_add_u32 s30, s30, s31")
        A("s_lshr_b32 s31, s28, 1\ns_lshl_b32 s31, s31, 2\ns_lshr_b32 s3, s29, 3\ns_add_u32 s31, s31, s3")
    def exch(wreg):
        A(f"s_lshl_b32 s4, s30, 3\ns_add_u32 s4, s4, s31\ns_lshl_b32 s70, s4, 16\ns_lshl_b32 s3, s{wreg}, 14\ns_add_u32 s70, s70, s3\ns_add_u32 s70, s70, {WS_OBUF}")
        A(f"s_lshl_b32 s71, s4, 6\ns_lshl_b32 s3, s{wreg}, 4\ns_add_u32 s71, s71, s3\ns_add_u32 s71, s71, {WS_FLAGS}")
        A(f"s_lshr_b32 s3, s{wreg}, 1\ns_add_u32 s3, s3, {NA}\ns_and_b32 s3, s3, 3\ns_lshl_b32 s3, s3, 15\ns_and_b32 s4, s{wreg}, 1\ns_lshl_b32 s4, s4, 14\ns_add_u32 s72, s3, s4")
    def getid():
        if P['tk2']: ticket_read(XL)
        else: A("s_mov_b32 s6, s2")
        decode()
    def fold():
        if P['dbg'] == 10:
            lab = f"Lf_{len(A.lines)}"
            A(f"s_cmp_lg_u32 s26, 0\ns_cbranch_scc1 {lab}\ns_lshl_b32 s3, s2, 7\ns_add_u32 s3, s3, {WS_STAMP + 32768}\nbuffer_load_dword v5, off, s[8:11], s3 sc1\ns_waitcnt vmcnt(0)\nv_readfirstlane_b32 s4, v5")
            A(f"{lab}_s:\ns_memrealtime s[20:21]\ns_waitcnt lgkmcnt(0)\ns_sub_u32 s3, s20, s4\ns_cmp_lt_u32 s3, {P['tfix']}\ns_cbranch_scc1 {lab}_s\n{lab}:")
            return
        if P['dbg'] != 9: return
        lab = f"Lf_{len(A.lines)}"
        A(f"s_cmp_lg_u32 s26, 0\ns_cbranch_scc1 {lab}\ns_waitcnt vmcnt(0)")
        srd(20, KDBG, 256)
        offs = [1*32768+0, 1*32768+16, 1*32768+32, 1*32768+80, 2*32768+0, 2*32768+16, 2*32768+32, 2*32768+48]
        A("v_mov_b32 v4, 0")
        for l, o in enumerate(offs): A(f"s_mov_b32 s3, {o}\nv_writelane_b32 v4, s3, {l}")
        A(f"s_lshl_b32 s3, s2, 7\ns_add_u32 s3, s3, {WS_STAMP}\ns_mov_b64 exec, 0xff\nbuffer_load_dword v5, v4, s[8:11], s3 offen sc1\nv_lshlrev_b32 v6, 3, v2\ns_waitcnt vmcnt(0)")
        A("v_not_b32 v7, v5\nbuffer_atomic_umax v5, v6, s[20:23], 0 offen\nbuffer_atomic_umax v7, v6, s[20:23], 0 offen offset:4\ns_mov_b64 exec, -1")
        A(f"{lab}:")
    A("s_cmp_ge_u32 s26, 4\ns_cbranch_scc1 L3_loader")
    A("s_waitcnt lgkmcnt(0)")
    srd(8, KWS, WS_SIZE)
    if P['tk2']:
        A("s_cmp_lg_u32 s26, 0\ns_cbranch_scc1 L3_notk")
        ticket_issue(8, 7, WS_CNT2)
        ticket_finish(8, 7, WS_CNT2, 0, "L3_tk", XL)
        A("L3_notk:")
    stamp(0, 2, 16, 26, 1)
    getid()
    A("s_and_b32 s64, s26, 1\ns_lshr_b32 s65, s26, 1")
    A("v_lshrrev_b32 v6, 4, v2\nv_bfe_u32 v7, v2, 2, 2\nv_and_b32 v8, 3, v2")
    A("v_and_b32 v5, 15, v2\ns_lshl_b32 s3, s30, 7\ns_lshl_b32 s4, s64, 6\ns_add_u32 s3, s3, s4\nv_add_u32 v5, s3, v5")
    A("s_lshl_b32 s3, s31, 7\ns_lshl_b32 s4, s65, 6\ns_add_u32 s3, s3, s4\nv_lshl_add_u32 v9, v6, 2, s3")
    A("v_lshlrev_b32 v27, 12, v5\nv_lshl_add_u32 v27, v9, 2, v27")
    ST = XR; DP = XR + 8
    A("s_cmp_lg_u32 s27, 0\ns_cbranch_scc1 L3_nost")
    srd(16, KDSK, 2048)
    A(f"v_lshlrev_b32 v5, 3, v5\nv_lshlrev_b32 v9, 1, v9\ns_mov_b32 s3, {WS_STATS}")
    for i in range(4): A(f"buffer_load_dwordx2 v[{ST+2*i}:{ST+1+2*i}], v5, s[8:11], s3 offen offset:{128*i}")
    for n in range(4): A(f"buffer_load_dwordx2 v[{DP+2*n}:{DP+1+2*n}], v9, s[16:19], 0 offen offset:{32*n}")
    A("L3_nost:")
    A("v_lshrrev_b32 v9, 1, v6\nv_lshlrev_b32 v9, 12, v9\ns_lshl_b32 s3, s64, 11\nv_add_u32 v9, s3, v9")
    A("v_lshrrev_b32 v3, 1, v8\nv_lshl_add_u32 v9, v3, 10, v9")
    A("v_and_b32 v4, 1, v6\nv_lshl_or_b32 v4, v4, 2, v7")
    A("v_lshl_or_b32 v5, v3, 3, v4\nv_lshl_add_u32 v9, v5, 4, v9")
    A("v_and_b32 v5, 1, v8\nv_lshl_add_u32 v10, v5, 3, v9\nv_xor_b32 v11, 128, v10")
    A("v_lshl_add_u32 v9, v6, 3, v7\nv_lshlrev_b32 v9, 8, v9\nv_lshl_add_u32 v9, v8, 3, v9\nv_add_u32 v9, 16384, v9")
    for n in range(4):
        A(f"s_lshl_b32 s3, s65, 2\ns_add_u32 s3, s3, {n}\nv_xor_b32 v5, s3, v4\nv_lshl_add_u32 v{12+n}, v5, 5, v9")
    A("v_and_b32 v5, 15, v2\nv_and_b32 v9, 7, v2\nv_xor_b32 v9, v9, v6\nv_lshlrev_b32 v9, 4, v9\nv_lshl_add_u32 v9, v5, 7, v9")
    A("s_lshl_b32 s3, s65, 13\ns_add_u32 s3, s3, 16384\nv_add_u32 v16, s3, v9\nv_xor_b32 v17, 64, v16")
    for r in range(8): A(f"v_add_u32 v{18+r}, 0x10000, v{10+r}")
    A("v_and_b32 v3, 15, v2\nv_lshrrev_b32 v4, 1, v6\ns_lshl_b32 s3, s65, 3\nv_or_b32 v4, s3, v4\nv_xor_b32 v4, v4, v3\nv_lshlrev_b32 v4, 4, v4")
    A(f"v_lshl_add_u32 v4, v3, 8, v4\nv_and_b32 v3, 1, v6\nv_lshl_add_u32 v4, v3, 3, v4\ns_lshl_b32 s3, s64, 14\ns_add_u32 s3, s3, {XL}\nv_add_u32 v4, s3, v4")
    for n in range(4): A(f"v_xor_b32 v{XA+n}, {32*n}, v4")
    exch(26)
    for r in range(0, 64, 2): A(f"v_pk_mov_b32 v[{ACCO+r}:{ACCO+r+1}], 0, 0")
    q = LQ()
    def reads(typ, slot, hh, buf):
        ab = 10 + 8 * (slot >> 1); so = (slot & 1) * 32768; f = FR[buf]
        def ra(i):
            off = so + hh * 8192 + 256 * i
            return [((buf, 'a', i, 0), f"ds_read_b64_tr_b16 v[{f+4*i}:{f+4*i+1}], v{ab} offset:{off}"),
                    ((buf, 'a', i), f"ds_read_b64_tr_b16 v[{f+4*i+2}:{f+4*i+3}], v{ab+1} offset:{off}")]
        def rb(n):
            g = f + 16 + 4 * n
            if typ == 'o':
                off = so + hh * 8192
                return [((buf, 'b', n, 0), f"ds_read_b64_tr_b16 v[{g}:{g+1}], v{ab+2+n} offset:{off}"),
                        ((buf, 'b', n), f"ds_read_b64_tr_b16 v[{g+2}:{g+3}], v{ab+2+n} offset:{off+1024}")]
            return [((buf, 'b', n), f"ds_read_b128 v[{g}:{g+3}], v{ab+6+hh} offset:{so + 2048*n}")]
        return ra(0) + rb(0) + ra(1) + ra(2) + ra(3) + rb(1) + rb(2) + rb(3)
    def half(typ, buf, rds, bar):
        accb = ACCO if typ == 'o' else ACCY
        f = FR[buf]
        for n in range(4):
            for i in range(4):
                k = n * 4 + i
                if bar and k == 4:
                    A("s_waitcnt lgkmcnt(0)"); q.all_done(); A("s_barrier")
                if k == 0: q.wait((buf, 'a', 3), (buf, 'b', 0))
                elif k == 4: q.wait((buf, 'b', 1))
                elif k == 8: q.wait((buf, 'b', 3))
                ii = 3 - i if n & 1 else i
                a = accb + (n * 4 + ii) * 4
                A(f"v_mfma_f32_16x16x32_bf16 v[{a}:{a+3}], v[{f+16+4*n}:{f+16+4*n+3}], v[{f+4*ii}:{f+4*ii+3}], v[{a}:{a+3}]")
                if bar and k < 4: continue
                left = 15 - k
                cnt = (len(rds) + left - 1) // left if left > 0 else len(rds)
                for _ in range(min(cnt, len(rds))):
                    t, x = rds.pop(0); q.issue(t, x)
        assert not rds
    A("s_cmp_lg_u32 s27, 0\ns_cbranch_scc1 L3_typeB")
    for r in range(0, 64, 2): A(f"v_pk_mov_b32 v[{ACCY+r}:{ACCY+r+1}], 0, 0")
    A("s_barrier")
    stamp(1, 2, 64, 26, 0)
    for t, x in reads('y', 0, 0, 0): q.issue(t, x)
    A("s_mov_b32 s24, 7")
    A(".p2align 4\nL3_yloop:")
    A(f"s_cmp_eq_u32 s24, {P['pz']}\ns_cbranch_scc1 L3_pause\nL3_back:")
    q.forget()
    for s in range(4):
        half('y', 0, reads('y', s, 1, 1), False)
        half('y', 1, reads('y', (s+1) & 3, 0, 0), True)
    A("s_sub_u32 s24, s24, 1\ns_cmp_lg_u32 s24, 0\ns_cbranch_scc1 L3_yloop")
    q.forget()
    for s in range(4):
        half('y', 0, reads('y', s, 1, 1), False)
        half('y', 1, reads('y' if s < 3 else 'o', (s+1) & 3, 0, 0), True)
    stamp(6, 2, 4, 26, 0)
    A(f"s_mov_b32 s24, {XO}\ns_branch L3_oloop")
    A("L3_pause:\ns_waitcnt vmcnt(0) lgkmcnt(0)")
    stamp(4, 2, 4, 26, 0)
    XB = FR[1]; DF = XR + 16; TT = XR + 20
    for n in range(4):
        for i in range(4): A(f"ds_read_b64 v[{XB+(n*4+i)*2}:{XB+(n*4+i)*2+1}], v{XA+n} offset:{4096*i}")
        if n == 2: A("s_waitcnt lgkmcnt(8)")
    for i in range(4): A(f"v_mul_f32 v{ST+2*i}, v{ST+2*i}, v{ST+1+2*i}")
    for n in range(4):
        for hw in range(2): A(f"v_lshlrev_b32 v{DF+2*hw}, 16, v{DP+2*n+hw}\nv_and_b32 v{DF+1+2*hw}, 0xffff0000, v{DP+2*n+hw}")
        A(f"s_waitcnt lgkmcnt({12-4*n})")
        for i in range(4):
            r = XB + (n * 4 + i) * 2; a = ACCY + (n * 4 + i) * 4; t = TT + 4 * (i & 1)
            for hw in range(2): A(f"v_lshlrev_b32 v{t+2*hw}, 16, v{r+hw}\nv_and_b32 v{t+2*hw+1}, 0xffff0000, v{r+hw}")
            for hw in range(2): A(pk('fma', t+2*hw, t+2*hw, ST+2*i, ST+2*i, sel='nhl', neg=[0,0,1]))
            for hw in range(2): A(pk('fma', a+2*hw, t+2*hw, DF+2*hw, a+2*hw))
    stamp(5, 2, 4, 26, 0)
    A("s_nop 1\ns_branch L3_back")
    A("L3_typeB:")
    A("s_barrier")
    stamp(1, 2, 64, 26, 0)
    for t, x in reads('o', 0, 0, 0): q.issue(t, x)
    A(f"s_mov_b32 s24, {NBS}")
    A(".p2align 4\nL3_oloop:")
    q.forget()
    for s in range(4):
        half('o', 0, reads('o', s, 1, 1), False)
        A("s_sub_u32 s24, s24, 1\ns_cmp_eq_u32 s24, 0\ns_cbranch_scc1 L3_otail")
        half('o', 1, reads('o', (s+1) & 3, 0, 0), True)
    A("s_branch L3_oloop")
    A("L3_otail:")
    A("s_waitcnt lgkmcnt(0)"); q.all_done()
    A("s_cmp_lg_u32 s27, 0\ns_cbranch_scc1 L3_nox")
    for n in range(4):
        for i in range(4): A(f"ds_read_b64 v[{XR+(n*4+i)*2}:{XR+(n*4+i)*2+1}], v{XA+n} offset:{4096*i}")
        if n == 2: A("s_waitcnt lgkmcnt(8)")
    A("L3_nox:")
    half('o', 1, [], False)
    stamp(2, 2, 4, 26, 0)
    A("v_lshlrev_b32 v5, 4, v2\nv_mov_b32 v9, 0")
    A("s_cmp_eq_u32 s27, 0\ns_cbranch_scc1 L3_finish")
    for k in range(16):
        if k % 4 == 0 and k: A("s_add_u32 s70, s70, 4096")
        A(f"buffer_store_dwordx4 v[{ACCO+4*k}:{ACCO+4*k+3}], v5, s[8:11], s70 offen offset:{1024*(k%4)} sc1")
    A("v_mov_b32 v3, 1\ns_waitcnt vmcnt(0)\ns_mov_b64 exec, 1")
    A("buffer_store_dword v3, v9, s[8:11], s71 offen sc1\ns_mov_b64 exec, -1")
    stamp(3, 2, 4, 26, 0)
    fold()
    A("s_branch L3_end")
    A("L3_finish:")
    srd(16, KOUT, 8 * MB)
    A(f"v_add_u32 v5, s72, v5\nv_mov_b32 v28, {fh(-LOG2E)}\ns_waitcnt lgkmcnt(0)\ns_barrier")
    for k in range(8): A(f"ds_read_b128 v[{32+4*k}:{35+4*k}], v5 offset:{1024*k}")
    for n in range(4):
        for i in range(4):
            k = n * 4 + i
            o = ACCO + 4*k; y = ACCY + 4*k; p = 32 + 4*k; r = XR + 2*k
            if k < 8: A(f"ds_read_b128 v[{64+4*k}:{67+4*k}], v5 offset:{1024*(k+8)}\ns_waitcnt lgkmcnt(8)")
            else: A(f"s_waitcnt lgkmcnt({15-k})")
            for e in (0, 2): A(pk('add', o+e, o+e, p+e))
            for e in (0, 2): A(pk('mul', p+e, o+e, 28, sel='nl'))
            for e in range(4): A(f"v_exp_f32 v{p+e}, v{p+e}")
            for e in (0, 2): A(pk('mul', o+e, o+e, y+e))
            for e in (0, 2): A(pk('add', p+e, p+e, '1.0', sel='nl'))
            for e in range(4): A(f"v_rcp_f32 v{p+e}, v{p+e}")
            for hw in range(2): A(f"v_lshlrev_b32 v{y+2*hw}, 16, v{r+hw}\nv_and_b32 v{y+2*hw+1}, 0xffff0000, v{r+hw}")
            for e in (0, 2): A(pk('fma', y+e, o+e, p+e, y+e))
            A(f"s_mov_b32 s3, {65536*i}")
            A(f"buffer_store_dwordx4 v[{y}:{y+3}], v27, s[16:19], s3 offen offset:{64*n}{OSTF}")
    stamp(3, 2, 4, 26, 0)
    fold()
    A("s_branch L3_end")
    A("L3_loader:")
    A("s_sub_u32 s26, s26, 4")
    A("s_lshl_b32 s64, s26, 12\nv_lshlrev_b32 v4, 4, v2\nv_add_u32 v3, s64, v4\nv_mov_b32 v22, 0")
    A("v_lshrrev_b32 v5, 4, v2")
    for j in range(4):
        A(f"v_or_b32 v6, {((j>>1)&1)<<2}, v5\nv_bfe_u32 v7, v2, 1, 3\nv_xor_b32 v7, v7, v6\nv_lshlrev_b32 v7, 5, v7")
        A("v_and_b32 v8, 1, v2\nv_lshl_add_u32 v7, v8, 4, v7")
        A(f"s_lshl_b32 s3, s26, 4\ns_add_u32 s3, s3, {4*j}\nv_add_u32 v9, s3, v5\nv_lshl_add_u32 v{14+j}, v9, 11, v7")
        if j: A(f"v_subrev_u32 v{14+j}, {1024*j}, v{14+j}")
    A("v_and_b32 v6, 15, v2")
    for j in range(4):
        A(f"v_add_u32 v7, {4*j}, v5\nv_xor_b32 v8, v6, v7\nv_lshlrev_b32 v8, 4, v8\nv_lshl_add_u32 v{24+j}, v7, 11, v8")
        if j: A(f"v_subrev_u32 v{24+j}, {1024*j}, v{24+j}")
    A("v_lshrrev_b32 v5, 3, v2\nv_and_b32 v6, 7, v2\nv_xor_b32 v6, v6, v5\nv_lshlrev_b32 v6, 4, v6")
    for j in range(4):
        A(f"s_lshl_b32 s3, s26, 5\ns_add_u32 s3, s3, {8*j}\nv_add_u32 v9, s3, v5\nv_lshl_add_u32 v{10+j}, v9, 11, v6")
        if j: A(f"v_subrev_u32 v{10+j}, {1024*j}, v{10+j}")
    A("s_waitcnt lgkmcnt(0)")
    srd(8, KWS, WS_SIZE); srd(16, KX, 4 * MB)
    A("s_mov_b32 s15, 0x20000\ns_mov_b32 s69, 0")
    getid()
    A(f"s_lshl_b32 s66, s30, 14\ns_add_u32 s66, s66, {WS_ACT}")
    WD = f"s_mov_b32 s12, s{KWD}\ns_and_b32 s13, s{KWD+1}, 0xffff\ns_mov_b32 s14, {3584*2048}\ns_lshl_b32 s67, s31, 8\ns_mov_b32 s68, 131072\n" + '\n'.join(f"v_mov_b32 v{10+j}, v{14+j}" for j in range(4))
    A("s_cmp_lg_u32 s27, 0\ns_cbranch_scc1 L3_lB")
    A(f"s_mov_b32 s12, s{KCRE}\ns_and_b32 s13, s{KCRE+1}, 0xffff\ns_mov_b32 s14, {2*MB}\ns_lshl_b32 s67, s31, 18\ns_mov_b32 s68, 128")
    A(f"s_mov_b32 s65, 0\ns_mov_b32 s24, {NA-4}\ns_branch L3_lgo")
    A("L3_lB:")
    A(WD)
    A(f"s_add_u32 s67, s67, {XO*131072}\ns_add_u32 s66, s66, {NA*262144}\ns_mov_b32 s65, 1000\ns_mov_b32 s24, {NBS-4}")
    A("L3_lgo:")
    def trace():
        if P['dbg'] != 6: return
        A("s_memrealtime s[92:93]\ns_waitcnt lgkmcnt(0)\ns_mov_b32 m0, s94\ns_nop 0\nv_writelane_b32 v40, s92, m0\ns_add_u32 s94, s94, 1")
    def trace_dump():
        if P['dbg'] != 6: return
        A(f"s_lshl_b32 s3, s6, 8\ns_add_u32 s3, s3, {WS_STAMP + 262144}\nv_lshlrev_b32 v41, 2, v2\nbuffer_store_dword v40, v41, s[8:11], s3 offen")
    if P['dbg'] == 6: A("s_mov_b32 s94, 0\nv_mov_b32 v40, 0")
    trace()
    def issue():
        A("s_add_u32 m0, s64, s69")
        for j in range(4): A(f"buffer_load_dwordx4 v3, s[8:11], s66 offen offset:{1024*j} lds")
        A("s_add_u32 m0, m0, 16384\ns_add_u32 s66, s66, 262144")
        for j in range(4): A(f"buffer_load_dwordx4 v{10+j}, s[12:15], s67 offen offset:{1024*j} lds")
        A("s_add_u32 s67, s67, s68\ns_add_u32 s69, s69, 32768\ns_and_b32 s69, s69, 0x1ffff\ns_add_u32 s65, s65, 1")
    issue(); issue()
    exch(26)
    A("s_lshl_b32 s73, s30, 18\ns_lshl_b32 s3, s26, 16\ns_add_u32 s73, s73, s3\ns_lshl_b32 s3, s31, 8\ns_add_u32 s73, s73, s3")
    A(f"s_lshl_b32 s74, s26, 13\ns_add_u32 s74, s74, {XL}")
    A("s_waitcnt vmcnt(8)\ns_barrier")
    trace()
    issue(); issue()
    A("s_cmp_lg_u32 s27, 0\ns_cbranch_scc1 L3_lloop")
    for hh in range(2):
        A(f"s_add_u32 m0, s74, {4096*hh}")
        for j in range(4): A(f"buffer_load_dwordx4 v{24+j}, s[16:19], s73 offen offset:{1024*j} lds")
        A("s_add_u32 s73, s73, 32768")
    for r in range(3):
        A("s_waitcnt vmcnt(24)\ns_barrier"); trace(); issue()
    A("s_sub_u32 s24, s24, 3")
    A(".p2align 4\nL3_lloop:")
    A("s_cmp_eq_u32 s65, 16\ns_cbranch_scc0 L3_ln1")
    A(f"s_mov_b32 s12, s{KCIM}\ns_and_b32 s13, s{KCIM+1}, 0xffff\ns_lshl_b32 s67, s31, 18")
    A("L3_ln1:")
    A("s_cmp_eq_u32 s65, 32\ns_cbranch_scc0 L3_ln2")
    A(WD)
    A("L3_ln2:")
    A("s_waitcnt vmcnt(16)\ns_barrier")
    trace()
    issue()
    A("s_sub_u32 s24, s24, 1\ns_cmp_lg_u32 s24, 0\ns_cbranch_scc1 L3_lloop")
    A("s_waitcnt vmcnt(16)\ns_barrier")
    trace()
    A("s_cmp_eq_u32 s27, 0\ns_cbranch_scc1 L3_ltA")
    A("s_waitcnt vmcnt(8)\ns_barrier"); trace(); A("s_waitcnt vmcnt(0)\ns_barrier"); trace(); trace_dump(); A("s_branch L3_end")
    A("L3_ltA:")
    def obuf_dma():
        for k in range(16):
            if k % 4 == 0:
                A(f"s_add_u32 m0, s72, {1024*k}")
                if k: A("s_add_u32 s70, s70, 4096")
            A(f"buffer_load_dwordx4 v4, s[8:11], s70 offen offset:{1024*(k%4)} sc1 lds")
    A("buffer_load_dword v23, v22, s[8:11], s71 offen sc1")
    A("s_waitcnt vmcnt(9)\ns_barrier"); trace(); A("s_waitcnt vmcnt(0)")
    A("v_readfirstlane_b32 s3, v23\ns_cmp_eq_u32 s3, 1\ns_cbranch_scc0 L3_llate")
    obuf_dma()
    A("s_barrier\ns_branch L3_ldone")
    A("L3_llate:")
    A("s_barrier\ns_mov_b32 s5, 0")
    A("L3_poll:")
    A("buffer_load_dword v23, v22, s[8:11], s71 offen sc1\ns_waitcnt vmcnt(0)\nv_readfirstlane_b32 s3, v23\ns_cmp_eq_u32 s3, 1\ns_cbranch_scc1 L3_got\ns_sleep 1\ns_add_u32 s5, s5, 1\ns_cmp_lt_u32 s5, 0x40000\ns_cbranch_scc1 L3_poll")
    A("L3_got:")
    obuf_dma()
    A("L3_ldone:")
    trace()
    A("s_waitcnt vmcnt(0)"); trace(); A("s_barrier"); trace(); trace_dump()
    A("L3_end:\ns_endpgm")

A.raw(f"; @launch kernel=k1_g1_kernel grid=(256,1,1) block=(512,1,1) lds={G1_LDS}")
A.raw("; @launch kernel=k2_g2_kernel grid=(256,1,1) block=(512,1,1) lds=163840")
A.raw('.amdgcn_target "amdgcn-amd-amdhsa--gfx950"')
A.raw('.text')
assert P['pz'] <= 6
g1(); g2()
A.raw('.section .rodata,"a"')
kdesc('k1_g1_kernel', 256, 100)
kdesc('k2_g2_kernel', 256, 100)
sys.stdout.write(A.text())
```

```python
import sys, math, struct
from asmlib import Asm

P = dict(stamp=0, X=13, dbg=0, pf2=1, pf3=1, pfa=1, pfb=2, slp=6, npk=2, pz=6, tk1=1, tk2=1, pfc=1, st3=1, xfirst=0, wpre=4, tfix=10000, ref=0)
for a in sys.argv[1:]:
    k, v = a.split('='); assert k in P, k; P[k] = int(v)
STAMP = P['stamp']; XO = P['X']
OSTF = ['', ' sc1', ' nt'][P['st3']]

def f2u(x): return struct.unpack('<I', struct.pack('<f', x))[0]
def fh(x): return '0x%08x' % f2u(x)

MB = 1 << 20
WS_XN = 0
WS_STATS = 4 * MB
WS_TBUF = 4 * MB + 65536
WS_FLAGS = 4 * MB + 196608
WS_CNT2 = 4 * MB + 262144
WS_ACT = 8 * MB
WS_OBUF = 32 * MB
WS_STAMP = 48 * MB
WS_SIZE = 64 * MB
LOG2E = 1.4426950408889634
KX, KLRE, KLIM, KBRE, KBIM, KCRE, KCIM, KLDT, KDSK, KWG, KWU, KWD, KOUT, KDBG, KWS = 32, 34, 36, 38, 40, 42, 44, 46, 48, 52, 54, 56, 58, 60, 62

A = Asm()

def kstart(name):
    A.raw(f'.globl {name}\n.p2align 8\n.type {name},@function\n{name}:')
    A.reset()

def kdesc(name, vgpr, sgpr):
    A.raw(f'''.p2align 6
.amdhsa_kernel {name}
  .amdhsa_next_free_vgpr {vgpr}
  .amdhsa_next_free_sgpr {sgpr}
  .amdhsa_accum_offset {(vgpr+3)//4*4}
  .amdhsa_group_segment_fixed_size 0
  .amdhsa_kernarg_size 128
  .amdhsa_user_sgpr_count 2
  .amdhsa_user_sgpr_kernarg_segment_ptr 1
  .amdhsa_system_sgpr_workgroup_id_x 1
.end_amdhsa_kernel''')

def srd(d, b, size):
    A(f"s_mov_b32 s{d}, s{b}\ns_and_b32 s{d+1}, s{b+1}, 0xffff\ns_mov_b32 s{d+2}, {size}\ns_mov_b32 s{d+3}, 0x20000")

def stamp(slot, kid, tmpv, cond=None, wave=0, dyn=None):
    if not STAMP: return
    sp = 88
    lab = f"Lst_{kid}_{slot}_{len(A.lines)}"
    if cond is not None: A(f"s_cmp_lg_u32 s{cond}, {wave}\ns_cbranch_scc1 {lab}")
    A(f"s_memrealtime s[{sp}:{sp+1}]\ns_memtime s[{sp+2}:{sp+3}]\ns_waitcnt lgkmcnt(0)")
    A(f"s_lshl_b32 s{sp+4}, s2, 7\ns_add_u32 s{sp+4}, s{sp+4}, {WS_STAMP + kid*256*128 + slot*16}")
    if dyn is not None: A(f"s_lshl_b32 s{sp+5}, s{dyn}, 4\ns_sub_u32 s{sp+4}, s{sp+4}, s{sp+5}")
    A(f"v_mov_b32 v{tmpv}, s{sp}\nv_mov_b32 v{tmpv+1}, s{sp+1}\nv_mov_b32 v{tmpv+2}, s{sp+2}\nv_mov_b32 v{tmpv+3}, s{sp+3}")
    A(f"s_mov_b64 exec, 1\nbuffer_store_dwordx4 v[{tmpv}:{tmpv+3}], off, s[8:11], s{sp+4}\ns_mov_b64 exec, -1")
    A(f"{lab}:")

class LQ:
    def __init__(self): self.n = 0; self.tag = {}; self.done = 0
    def issue(self, tag, text):
        A(text); self.n += 1; self.tag[tag] = self.n
    def wait(self, *tags):
        need = max(self.tag[t] for t in tags)
        if need <= self.done: return
        c = self.n - need
        assert c <= 15
        A(f"s_waitcnt lgkmcnt({c})"); self.done = need
    def all_done(self): self.done = self.n
    def forget(self): self.done = 0

NPK = [0]
def pk(op, d, *srcs, sel=None, neg=None):
    n = len(srcs); sel = sel or 'n' * n; neg = neg or [0] * n
    t = [f"v[{x}:{x+1}]" if isinstance(x, int) else x for x in srcs]
    for x in srcs:
        if isinstance(x, int): assert x % 2 == 0, x
    assert d % 2 == 0
    lo = [{'n': 0, 'l': 0, 'h': 1, 'x': 1}[c] for c in sel]; hi = [{'n': 1, 'l': 0, 'h': 1, 'x': 0}[c] for c in sel]
    nl = [1 if c in (1, 'l') else 0 for c in neg]; nh = [1 if c in (1, 'h') else 0 for c in neg]
    if NPK[0]:
        out = []
        halves = [(0, lo, nl), (1, hi, nh)]
        srcs_hi = [x + hi[k] for k, x in enumerate(srcs) if isinstance(x, int)]
        srcs_lo = [x + lo[k] for k, x in enumerate(srcs) if isinstance(x, int)]
        if d in srcs_hi:
            assert d + 1 not in srcs_lo, "alias"
            halves = halves[::-1]
        for hf, sl, ng in halves:
            ops = [(('-' if ng[k] else '') + f"v{x+sl[k]}") if isinstance(x, int) else x for k, x in enumerate(srcs)]
            dd = f"v{d+hf}"
            if op == 'fma' and ops[2] == dd and not any(ng): out.append(f"v_fmac_f32 {dd}, {ops[0]}, {ops[1]}")
            elif op == 'fma': out.append(f"v_fma_f32 {dd}, " + ', '.join(ops))
            elif op == 'add' and ng[1] and not ng[0]: out.append(f"v_sub_f32 {dd}, {ops[0]}, {ops[1][1:]}")
            else:
                if not ops[1].startswith('v'): ops = ops[::-1]
                assert not any(ng)
                out.append(f"v_{op}_f32 {dd}, " + ', '.join(ops))
        return '\n'.join(out)
    f = lambda v: '[' + ','.join(map(str, v)) + ']'
    m = ''
    if any(lo): m += f" op_sel:{f(lo)}"
    if not all(hi): m += f" op_sel_hi:{f(hi)}"
    if any(nl): m += f" neg_lo:{f(nl)}"
    if any(nh): m += f" neg_hi:{f(nh)}"
    return f"v_pk_{op}_f32 v[{d}:{d+1}], " + ', '.join(t) + m

def cma2(args):
    l = [[pk('fma', t, a, b, c, sel='lnn'), pk('fma', d, a, b, t, sel='hxn', neg=['l', 0, 0])] for d, a, b, c, t in args]
    for k in range(2):
        for x in l: A(x[k])

def ticket_issue(srdn, shift, base):
    A("s_getreg_b32 s3, hwreg(HW_REG_XCC_ID)\ns_and_b32 s3, s3, 7")
    A(f"s_lshl_b32 s5, s3, {shift}\ns_add_u32 s5, s5, {base}\nv_mov_b32 v20, 1\ns_mov_b64 exec, 1")
    A(f"buffer_atomic_add v20, off, s[{srdn}:{srdn+3}], s5 sc0 sc1\ns_mov_b64 exec, -1")
def ticket_finish(srdn, shift, base, young, lab, ldsaddr):
    A(f"s_mov_b32 s4, 0\ns_waitcnt vmcnt({young})\n{lab}_chk:")
    A(f"v_readfirstlane_b32 s29, v20\ns_cmp_lt_u32 s29, 32\ns_cbranch_scc1 {lab}_ok")
    A(f"s_add_u32 s4, s4, 1\ns_cmp_ge_u32 s4, 8\ns_cbranch_scc1 {lab}_ok")
    A(f"s_add_u32 s3, s3, 1\ns_and_b32 s3, s3, 7\ns_lshl_b32 s5, s3, {shift}\ns_add_u32 s5, s5, {base}\nv_mov_b32 v20, 1\ns_mov_b64 exec, 1")
    A(f"buffer_atomic_add v20, off, s[{srdn}:{srdn+3}], s5 sc0 sc1\ns_mov_b64 exec, -1\ns_waitcnt vmcnt(0)\ns_branch {lab}_chk")
    A(f"{lab}_ok:\ns_lshl_b32 s29, s29, 3\ns_add_u32 s29, s29, s3\ns_and_b32 s29, s29, 255")
    A(f"v_mov_b32 v20, s29\nv_mov_b32 v21, {ldsaddr}\nds_write_b32 v21, v20\ns_waitcnt lgkmcnt(0)")
def ticket_read(ldsaddr, bar=True):
    if bar: A("s_barrier")
    A(f"v_mov_b32 v21, {ldsaddr}\nds_read_b32 v20, v21\ns_waitcnt lgkmcnt(0)\nv_readfirstlane_b32 s6, v20\ns_and_b32 s6, s6, 255")

SLOT1 = 34816
OFF_WG, OFF_WU, OFF_B = 16384, 23552, 30720
G1_SCR = 4 * SLOT1
G1_LDS = G1_SCR + 1024 + 512 + 64
TKL = G1_SCR + 1536
ACC = 96; AFR = 16; BFR = 48
def acc(b, i): return ACC + (b * 4 + i) * 4
PB = 224
def pr(b, k): return PB + 16 * b + k

def gelu_pair(bg, bu, T):
    K = T + 20
    A("s_lshr_b32 s66, s64, 2\ns_lshl_b32 s66, s66, 18\ns_and_b32 s3, s64, 3\ns_lshl_b32 s3, s3, 12\ns_add_u32 s66, s66, s3\ns_add_u32 s66, s66, s65\ns_add_u32 s64, s64, 1")
    for h in range(2):
        prs = [(acc(bg, 2*h + ii) + 2*k, acc(bu, 2*h + ii) + 2*k) for ii in range(2) for k in range(2)]
        for n, (g, u) in enumerate(prs): A(pk('mul', T+2*n, g, g))
        for n, (g, u) in enumerate(prs): A(pk('fma', T+2*n, T+2*n, K, K, sel='nlh'))
        for n, (g, u) in enumerate(prs): A(pk('mul', T+2*n, T+2*n, g))
        for n, (g, u) in enumerate(prs):
            A(f"v_exp_f32 v{T+2*n}, v{T+2*n}\nv_exp_f32 v{T+2*n+1}, v{T+2*n+1}")
            A(pk('mul', T+8+2*n, g, u))
        for n in range(4): A(pk('add', T+2*n, T+2*n, '1.0', sel='nl'))
        for e in range(8): A(f"v_rcp_f32 v{T+e}, v{T+e}")
        for n in range(4): A(pk('mul', T+8+2*n, T+8+2*n, T+2*n))
        o = acc(bg, 2 * h)
        for n in range(4): A(f"v_cvt_pk_bf16_f32 v{o+n}, v{T+8+2*n}, v{T+9+2*n}")
        A(f"buffer_store_dwordx4 v[{o}:{o+3}], v{10+h}, s[8:11], s66 offen sc1")

def g1_loop(kind):
    NBLK = 10 if kind == 0 else 8
    NBUF = 5 if kind == 0 else 8
    BAR = NBLK - 3
    ND = 4 if kind == 0 else 5
    q = LQ()
    def bfr(b): return BFR + (b % NBUF) * 4
    def rd_A(slot, par):
        return [(('A', par, i), f"ds_read_b128 v[{AFR+par*16+i*4}:{AFR+par*16+i*4+3}], v{4+(slot>>1)} offset:{(slot&1)*SLOT1 + i*1024}") for i in range(4)]
    def rd_B(slot, b):
        f = bfr(b); so = (slot & 1) * SLOT1
        if kind == 0 or b < 4:
            j = (b >> 1) + (0 if kind == 0 else 5)
            off = so + (b & 1) * 7168 + 32 * j
            return [(('B', b, 0), f"ds_read_b64_tr_b16 v[{f}:{f+1}], v{6+(slot>>1)} offset:{off}"),
                    (('B', b), f"ds_read_b64_tr_b16 v[{f+2}:{f+3}], v{6+(slot>>1)} offset:{off+1792}")]
        idx = ((b - 4) & 1) * 2 + ((b - 4) >> 1)
        return [(('B', b), f"ds_read_b128 v[{f}:{f+3}], v{8+(slot>>1)} offset:{so + idx*1024}")]
    def dma(slot, part='ab'):
        base = slot * SLOT1
        if kind == 0:
            return [[f"s_add_u32 m0, s22, {base + OFF_WG}", "buffer_load_dwordx4 v2, s[12:15], s20 offen lds"],
                    ["s_mov_b64 exec, s[30:31]", "buffer_load_dwordx4 v3, s[12:15], s20 offen offset:1024 lds", "s_mov_b64 exec, -1"],
                    [f"s_add_u32 m0, s22, {base + OFF_WU}", "buffer_load_dwordx4 v2, s[16:19], s20 offen lds"],
                    ["s_mov_b64 exec, s[30:31]", "buffer_load_dwordx4 v3, s[16:19], s20 offen offset:1024 lds", "s_mov_b64 exec, -1", "s_add_u32 s20, s20, 229376"]]
        la = [[f"s_add_u32 m0, s22, {base}", "buffer_load_dwordx4 v2, s[8:11], s20 offen sc1 lds"],
              ["buffer_load_dwordx4 v2, s[8:11], s20 offen offset:1024 sc1 lds"],
              ["buffer_load_dwordx4 v2, s[8:11], s20 offen offset:2048 sc1 lds"],
              ["buffer_load_dwordx4 v2, s[8:11], s20 offen offset:3072 sc1 lds", "s_add_u32 s20, s20, 131072"]]
        lb = [[f"s_add_u32 m0, s23, {base + OFF_B}", "buffer_load_dwordx4 v3, s[12:15], s21 offen lds", "s_add_u32 s21, s21, 64"]]
        return (la if 'a' in part else []) + (lb if 'b' in part else [])
    def first_reads():
        for t, x in rd_A(0, 0) + rd_B(0, 0) + rd_B(0, 1) + rd_B(0, 2) + rd_B(0, 3): q.issue(t, x)
    def stage(slot, do_dma, vm, last=False, bar=True, fill=None, nfill=0, post_bar=None, early=None, dslot=None, czero=False, epart='ab', dpart='ab'):
        par = slot & 1
        pend = dma(early, epart) if early is not None else []
        if dslot is None: dslot = slot
        for b in range(NBLK):
            rds = []
            if b + 4 < NBLK: rds = rd_B(slot, b + 4)
            if b == BAR and not last:
                if bar:
                    A(f"s_waitcnt vmcnt({vm}) lgkmcnt(0)"); q.all_done()
                    A("s_barrier")
                    if post_bar: A(post_bar)
                ns = (slot + 1) & 3
                rds = rd_A(ns, par ^ 1) + rd_B(ns, 0) + rd_B(ns, 1)
                assert not pend
                if do_dma: pend = dma(dslot, dpart)
            elif b > BAR and not last:
                rds = rd_B((slot + 1) & 3, b - BAR + 1)
            for i in range(4):
                if b == 0: q.wait(('A', par, i), ('B', b))
                else: q.wait(('B', b))
                ii = 3 - i if b & 1 else i
                a = acc(b, ii); fa = AFR + par * 16 + ii * 4; fb = bfr(b)
                A(f"v_mfma_f32_16x16x32_bf16 v[{a}:{a+3}], v[{fa}:{fa+3}], v[{fb}:{fb+3}], " + ("0" if czero else f"v[{a}:{a+3}]"))
                for _ in range((len(rds) + (3 - i)) // (4 - i)):
                    t, x = rds.pop(0); q.issue(t, x)
                for _ in range(nfill):
                    if fill: A(fill.pop(0))
                if pend and ((b > BAR and (i & 1)) or (b < BAR and i == 3)):
                    for x in pend.pop(0): A(x)
            if b == NBLK - 1:
                while pend:
                    for x in pend.pop(0): A(x)
    return first_reads, stage, q, ND, dma

def ssm_params():
    L = []
    def E(t): L.extend(t.split('\n'))
    for b in range(2):
        lr, li, ld = 80 + 3*b, 81 + 3*b, 82 + 3*b
        LR, LI = pr(b,0), pr(b,2)
        E(f"v_lshlrev_b32 v{lr}, 16, v{lr}\nv_lshlrev_b32 v{li}, 16, v{li}\nv_lshlrev_b32 v{ld}, 16, v{ld}")
        E(f"v_mul_f32 v{ld}, {fh(LOG2E)}, v{ld}\nv_exp_f32 v{ld}, v{ld}\nv_mul_f32 v14, v{lr}, v{lr}\nv_cvt_pk_bf16_f32 v{ld}, v{ld}, v{ld}\nv_and_b32 v{ld}, 0xffff0000, v{ld}")
        E(f"v_mul_f32 v10, v{ld}, v{lr}\nv_mul_f32 v10, {fh(LOG2E)}, v10\nv_exp_f32 v10, v10")
        E(f"v_mul_f32 v11, v{ld}, v{li}\nv_mul_f32 v11, {fh(1/(2*math.pi))}, v11\nv_rndne_f32 v12, v11\nv_sub_f32 v11, v11, v12")
        E(f"v_cos_f32 v12, v11\nv_sin_f32 v13, v11\nv_fmac_f32 v14, v{li}, v{li}\nv_rcp_f32 v11, v14")
        E(f"v_mul_f32 v{LR}, v10, v12\nv_mul_f32 v{LI}, v10, v13")
        E(f"v_add_f32 v10, -1.0, v{LR}\nv_add_f32 v11, v11, v11")
        E(f"v_mul_f32 v12, v10, v{lr}\nv_fmac_f32 v12, v{LI}, v{li}\nv_mul_f32 v{pr(b,12)}, v12, v11")
        E(f"v_mul_f32 v12, v{LI}, v{lr}\nv_fma_f32 v12, -v10, v{li}, v12\nv_mul_f32 v{pr(b,13)}, v12, v11")
        cur = (LR, LI)
        dsts = {2: (LR+1, LI+1), 16: (pr(b,4), pr(b,5)), 32: (pr(b,6), pr(b,7)), 64: (pr(b,8), pr(b,9)), 256: (pr(b,10), pr(b,11))}
        e = 1; tog = 0
        while e < 256:
            e *= 2
            d = dsts.get(e, (10 + 2*tog, 11 + 2*tog)); tog ^= 1
            E(f"v_mul_f32 v14, v{cur[1]}, v{cur[1]}\nv_mul_f32 v15, v{cur[0]}, v{cur[1]}")
            E(f"v_fma_f32 v{d[0]}, v{cur[0]}, v{cur[0]}, -v14\nv_add_f32 v{d[1]}, v15, v15")
            cur = d
        E("v_and_b32 v14, 32, v1\nv_cmp_ne_u32 vcc, 0, v14\nv_mov_b32 v14, 1.0\nv_mov_b32 v15, 0")
        E(f"v_cndmask_b32 v10, v14, v{pr(b,6)}, vcc\nv_cndmask_b32 v11, v15, v{pr(b,7)}, vcc")
        E("v_and_b32 v14, 16, v1\nv_cmp_ne_u32 vcc, 0, v14")
        E(f"v_mul_f32 v12, v10, v{pr(b,4)}\nv_fma_f32 v12, -v11, v{pr(b,5)}, v12\nv_mul_f32 v13, v10, v{pr(b,5)}\nv_fmac_f32 v13, v11, v{pr(b,4)}")
        E(f"v_cndmask_b32 v{pr(b,14)}, v10, v12, vcc\nv_cndmask_b32 v{pr(b,15)}, v11, v13, vcc")
    return L

def ln_phase(kind):
    X = 116; R = 132
    for d in range(8): A(f"v_lshlrev_b32 v{X+2*d}, 16, v{108+d}\nv_and_b32 v{X+1+2*d}, 0xffff0000, v{108+d}")
    A(pk('add', R, X, X+2)); A(pk('add', R+2, X+4, X+6))
    A(pk('add', R, R, X+8)); A(pk('add', R+2, R+2, X+10)); A(pk('add', R, R, X+12)); A(pk('add', R+2, R+2, X+14))
    A(pk('add', R, R, R+2)); A(f"v_add_f32 v{R}, v{R}, v{R+1}")
    def red8(v):
        A(f"v_add_f32_dpp v{v}, v{v}, v{v} quad_perm:[1,0,3,2] row_mask:0xf bank_mask:0xf")
        A(f"v_add_f32_dpp v{v}, v{v}, v{v} quad_perm:[2,3,0,1] row_mask:0xf bank_mask:0xf")
        A(f"v_add_f32_dpp v{v}, v{v}, v{v} row_half_mirror row_mask:0xf bank_mask:0xf")
    red8(R)
    A(f"v_mul_f32 v{R+4}, {fh(1/128)}, v{R}")
    for d in range(8): A(pk('add', R+8+2*d, X+2*d, R+4, sel='nl', neg=[0, 1]))
    A(pk('mul', R, R+8, R+8)); A(pk('mul', R+2, R+10, R+10))
    for d in range(2, 8): A(pk('fma', R+2*(d&1), R+8+2*d, R+8+2*d, R+2*(d&1)))
    A(pk('add', R, R, R+2)); A(f"v_add_f32 v{R+5}, v{R}, v{R+1}")
    red8(R+5)
    A(f"ds_write_b64 v107, v[{R+4}:{R+5}]\ns_waitcnt lgkmcnt(0)\ns_barrier")
    for k in range(4): A(f"ds_read_b128 v[{R+8+4*k}:{R+11+4*k}], v106 offset:{16*k}")
    A("s_waitcnt lgkmcnt(0)")
    Q = R + 8
    A(pk('add', R, Q, Q+2)); A(pk('add', R+2, Q+4, Q+6)); A(pk('add', R, R, Q+8)); A(pk('add', R+2, R+2, Q+10)); A(pk('add', R, R, Q+12)); A(pk('add', R+2, R+2, Q+14))
    A(pk('add', R, R, R+2))
    A(f"v_mul_f32 v{R}, {fh(0.125)}, v{R}\nv_mul_f32 v{R+1}, {fh(1/1024)}, v{R+1}")
    for k in range(8): A(f"v_sub_f32 v{Q+2*k}, v{Q+2*k}, v{R}")
    A(f"v_mul_f32 v{R+2}, v{Q}, v{Q}\nv_mul_f32 v{R+3}, v{Q+2}, v{Q+2}")
    for k in range(2, 8): A(f"v_fmac_f32 v{R+2+(k&1)}, v{Q+2*k}, v{Q+2*k}")
    A(f"v_add_f32 v{R+2}, v{R+2}, v{R+3}\nv_fmac_f32 v{R+1}, {fh(0.125)}, v{R+2}")
    A(f"v_cvt_pk_bf16_f32 v{R+2}, v{R}, v{R+1}\nv_lshlrev_b32 v{R}, 16, v{R+2}\nv_and_b32 v{R+1}, 0xffff0000, v{R+2}")
    A(f"v_add_f32 v{R+1}, {fh(1e-5)}, v{R+1}\nv_cvt_pk_bf16_f32 v{R+1}, v{R+1}, v{R+1}\nv_and_b32 v{R+1}, 0xffff0000, v{R+1}")
    A(f"v_sqrt_f32 v{R+1}, v{R+1}")
    for d in range(8): A(pk('add', X+2*d, X+2*d, R, sel='nl', neg=[0, 1]))
    A(f"v_cvt_pk_bf16_f32 v{R+1}, v{R+1}, v{R+1}\nv_and_b32 v{R+1}, 0xffff0000, v{R+1}\nv_rcp_f32 v{R+1}, v{R+1}")
    for d in range(8): A(f"v_cvt_pk_bf16_f32 v{108+d}, v{X+2*d}, v{X+2*d+1}")
    for d in range(8): A(f"v_lshlrev_b32 v{X+2*d}, 16, v{108+d}\nv_and_b32 v{X+1+2*d}, 0xffff0000, v{108+d}")
    for d in range(8): A(pk('mul', X+2*d, X+2*d, R, sel='nh'))
    for d in range(8): A(f"v_cvt_pk_bf16_f32 v{108+d}, v{X+2*d}, v{X+2*d+1}")
    A(f"s_mov_b32 s3, {WS_XN}\ns_mov_b32 s4, {WS_XN + 262144}")
    A("buffer_store_dwordx4 v[108:111], v102, s[8:11], s3 offen sc1\nbuffer_store_dwordx4 v[112:115], v102, s[8:11], s4 offen sc1")
    if kind == 0:
        A("s_cmp_lg_u32 s26, 3\ns_cbranch_scc1 L2_lni2")
        A(f"s_lshl_b32 s3, s2, 2\ns_add_u32 s3, s3, {WS_CNT2}\nv_mov_b32 v107, 0\ns_mov_b64 exec, 1\nbuffer_store_dword v107, off, s[8:11], s3\ns_mov_b64 exec, -1")
        A("L2_lni2:\ns_cmp_lg_u32 s26, 2\ns_cbranch_scc1 L2_lni3")
        A(f"v_lshlrev_b32 v100, 3, v100\ns_mov_b32 s3, {WS_STATS}\ns_mov_b32 exec_lo, 0x01010101\ns_mov_b32 exec_hi, 0x01010101")
        A(f"buffer_store_dwordx2 v[{R}:{R+1}], v100, s[8:11], s3 offen\ns_mov_b64 exec, -1")
        A("L2_lni3:")

def g1():
    kstart('k1_g1_kernel')
    if P['ref']: A("s_memrealtime s[100:101]")
    A("s_cmp_ge_u32 s2, 256\ns_cbranch_scc1 L2_end")
    A("s_load_dwordx16 s[32:47], s[0:1], 0\ns_load_dwordx16 s[48:63], s[0:1], 64")
    A("v_and_b32 v1, 63, v0\nv_lshrrev_b32 v10, 6, v0\nv_readfirstlane_b32 s25, v10")
    A("s_lshr_b32 s7, s2, 5\ns_mov_b32 s30, -1\ns_mov_b32 s31, 0xffff")
    A("v_lshrrev_b32 v103, 3, v1\ns_and_b32 s3, s2, 1\ns_lshl_b32 s3, s3, 3\nv_add_u32 v103, s3, v103\nv_and_b32 v104, 7, v1")
    A("s_bfe_u32 s4, s2, 0x20001\ns_bfe_u32 s5, s2, 0x20003\ns_lshl_b32 s3, s7, 8\ns_lshl_b32 s29, s5, 6\ns_add_u32 s3, s3, s29\ns_lshl_b32 s29, s4, 2\ns_add_u32 s3, s3, s29")
    A("v_lshrrev_b32 v100, 2, v103\nv_lshlrev_b32 v100, 4, v100\nv_and_b32 v101, 3, v103\nv_add3_u32 v100, v100, v101, s3")
    A("s_lshl_b32 s3, s25, 8\nv_lshlrev_b32 v101, 11, v100\nv_lshl_add_u32 v101, v104, 4, v101\nv_add_u32 v101, s3, v101")
    A("s_lshl_b32 s20, s7, 14\ns_lshl_b32 s5, s5, 12\ns_add_u32 s20, s20, s5\ns_lshl_b32 s4, s4, 10\ns_add_u32 s20, s20, s4\ns_lshl_b32 s4, s25, 19\ns_add_u32 s20, s20, s4")
    A("s_and_b32 s26, s25, 3")
    A("s_waitcnt lgkmcnt(0)")
    srd(80, KX, 4 * MB); srd(96, KDBG, 256)
    XL = "buffer_load_dwordx4 v[108:111], v101, s[80:83], 0 offen\nbuffer_load_dwordx4 v[112:115], v101, s[80:83], 0 offen offset:128"
    A(XL)
    srd(8, KWS, WS_SIZE)
    stamp(0, 1, 16, 25, 0)
    if P['ref'] == 2:
        A("s_cmp_lg_u32 s25, 0\ns_cbranch_scc1 L2_r2\ns_not_b32 s3, s100\nv_mov_b32 v16, s3\ns_mov_b64 exec, 1\nbuffer_atomic_umax v16, off, s[96:99], 0 offset:8 sc1\ns_mov_b64 exec, -1\nL2_r2:")
    A("v_lshrrev_b32 v102, 2, v104\nv_lshlrev_b32 v102, 17, v102\nv_and_b32 v105, 3, v104\nv_lshl_add_u32 v102, v105, 8, v102\nv_lshl_add_u32 v102, v103, 4, v102\nv_add_u32 v102, s20, v102")
    A(f"v_lshrrev_b32 v106, 3, v1\nv_lshlrev_b32 v106, 6, v106\nv_add_u32 v106, {G1_SCR+1024}, v106\ns_lshl_b32 s3, s25, 3\nv_add_u32 v107, s3, v106")
    A(f"s_lshl_b32 s3, s26, 12\nv_lshlrev_b32 v4, 4, v1\nv_add_u32 v4, s3, v4\nv_add_u32 v5, {2*SLOT1}, v4")
    A("v_lshrrev_b32 v10, 4, v1\nv_bfe_u32 v11, v1, 2, 2\nv_and_b32 v12, 3, v1")
    A("v_and_b32 v13, 1, v10\nv_lshl_or_b32 v13, v13, 2, v11\nv_lshrrev_b32 v14, 1, v10\nv_lshl_or_b32 v13, v14, 4, v13")
    A(f"v_mul_u32_u24 v13, 224, v13\nv_lshl_add_u32 v13, v12, 3, v13\nv_add_u32 v6, {OFF_WG}, v13\nv_add_u32 v7, {2*SLOT1}, v6")
    A("v_and_b32 v13, 15, v1\nv_lshrrev_b32 v14, 2, v13\nv_sub_u32 v14, 0, v14\nv_and_b32 v14, 3, v14\nv_xor_b32 v14, v14, v10")
    A(f"v_lshlrev_b32 v13, 6, v13\nv_lshl_add_u32 v13, v14, 4, v13\nv_add_u32 v8, {OFF_B}, v13\nv_add_u32 v9, {2*SLOT1}, v8")
    A("v_min_u32 v94, 27, v1\nv_lshlrev_b32 v94, 7, v94\nv_and_b32 v95, 15, v1\nv_lshlrev_b32 v95, 7, v95")
    A("s_cmp_ge_u32 s25, 4\ns_cbranch_scc1 L2_kind1")
    g1_body(0)
    A("s_branch L2_end")
    A("L2_kind1:")
    g1_body(1)
    A("L2_end:\ns_endpgm")

def g1_body(kind):
    first_reads, stage, q, ND, dma = g1_loop(kind)
    def E(groups):
        for g in groups:
            for x in g: A(x)
    def touch(): A("buffer_load_dword v91, v90, s[84:87], s94 offen\ns_add_u32 s94, s94, s95")
    PF3 = P['pf3'] and kind == 0
    def pf3_off(idr, chunk):
        A(f"s_and_b32 s4, s{idr}, 7\ns_lshr_b32 s5, s{idr}, 3\ns_mul_i32 s94, s4, 896\ns_mul_i32 s3, s5, 28672\ns_add_u32 s94, s94, s3")
        A("s_lshl_b32 s4, s4, 18\ns_lshl_b32 s5, s5, 13\ns_add_u32 s4, s4, s5\ns_cmp_ge_u32 s26, 2\ns_cselect_b32 s94, s4, s94")
        if chunk: A(f"s_mul_i32 s3, s95, {chunk}\ns_add_u32 s94, s94, s3")
    if kind == 0:
        A(f"s_cmp_eq_u32 s26, 1\ns_cselect_b32 s4, s{KWU}, s{KWG}\ns_cselect_b32 s5, s{KWU+1}, s{KWG+1}")
        A(f"s_cmp_eq_u32 s26, 2\ns_cselect_b32 s4, s{KBRE}, s4\ns_cselect_b32 s5, s{KBRE+1}, s5")
        A(f"s_cmp_eq_u32 s26, 3\ns_cselect_b32 s4, s{KBIM}, s4\ns_cselect_b32 s5, s{KBIM+1}, s5")
        srd(84, 4, 1024 * 7168)
        A(f"s_mov_b32 s95, 917504\ns_cmp_ge_u32 s26, 2\ns_cselect_b32 s86, {2*MB}, s86\ns_cselect_b32 s95, 256, s95")
        A("v_min_u32 v10, 27, v1\nv_mul_u32_u24 v11, 9363, v10\nv_lshrrev_b32 v11, 16, v11\nv_mul_u32_u24 v12, 7, v11\nv_sub_u32 v12, v10, v12")
        A("v_mul_u32_u24 v11, 7168, v11\nv_lshl_add_u32 v90, v12, 7, v11")
        A("s_cmp_ge_u32 s26, 2\ns_cbranch_scc0 L2_pf3a")
        A("v_and_b32 v10, 1, v1\nv_bfe_u32 v11, v1, 1, 2\nv_lshlrev_b32 v11, 11, v11\nv_lshl_add_u32 v90, v10, 7, v11\nL2_pf3a:")
        pf3_off(2, 0)
        srd(12, KWG, 1024 * 7168); srd(16, KWU, 1024 * 7168)
        A("s_mov_b32 s3, 4682")
        A("s_and_b32 s4, s26, 1\ns_lshl_b32 s4, s4, 2\ns_lshr_b32 s5, s26, 1\ns_lshl_b32 s5, s5, 4\ns_or_b32 s4, s4, s5")
        for v, add in ((2, 0), (3, 64)):
            A(f"v_add_u32 v10, {add}, v1\nv_mul_u32_u24 v11, s3, v10\nv_lshrrev_b32 v11, 16, v11")
            A("v_mul_u32_u24 v12, 14, v11\nv_sub_u32 v12, v10, v12")
            A("v_and_b32 v13, 3, v11\nv_lshrrev_b32 v11, 2, v11\nv_lshl_or_b32 v13, v11, 3, v13")
            A(f"v_or_b32 v13, s4, v13\nv_mul_u32_u24 v13, 7168, v13\nv_lshl_add_u32 v{v}, v12, 4, v13")
        A("v_subrev_u32 v3, 1024, v3\ns_mul_i32 s22, s26, 1792")
        A("s_waitcnt vmcnt(0)")
        if PF3:
            for _ in range(P['pfa']): touch()
    else:
        A("v_lshlrev_b32 v10, 2, v1\ns_cmp_eq_u32 s26, 1\ns_cbranch_scc1 L2_in1\ns_cmp_eq_u32 s26, 2\ns_cbranch_scc1 L2_in2\ns_cmp_eq_u32 s26, 3\ns_cbranch_scc1 L2_in3")
        A(f"s_lshl_b32 s3, s2, 8\ns_add_u32 s3, s3, {WS_TBUF}\nv_mov_b32 v11, -1\nbuffer_store_dword v11, v10, s[8:11], s3 offen sc1\ns_branch L2_in4")
        A(f"L2_in1:\ns_lshl_b32 s3, s2, 5\ns_add_u32 s3, s3, {WS_FLAGS}\nv_mov_b32 v11, 0\ns_mov_b64 exec, 0xff\nbuffer_store_dword v11, v10, s[8:11], s3 offen\ns_mov_b64 exec, -1\ns_branch L2_in4")
        A("L2_in2:")
        A("s_getpc_b64 s[16:17]\nL2_pc:\ns_sub_u32 s16, s16, L2_pc-k1_g1_kernel\ns_subb_u32 s17, s17, 0")
        A("s_lshr_b32 s3, s2, 3\ns_lshl_b32 s3, s3, 4\nv_and_b32 v11, 15, v1\nv_add_u32 v11, s3, v11\nv_lshlrev_b32 v11, 7, v11\ns_mov_b32 s3, L3_end-k1_g1_kernel\nv_min_u32 v11, s3, v11")
        if not P['pfc']: A("v_mov_b32 v11, 0")
        A("global_load_dword v91, v11, s[16:17]\ns_branch L2_in4")
        A("L2_in3:")
        ticket_issue(96, 5, 16)
        A("s_mov_b32 s79, s3")
        A("L2_in4:")
        A(f"s_lshl_b32 s3, s26, 8\ns_add_u32 s3, s3, {G1_SCR}\nv_add_u32 v13, s3, v10\nv_mov_b32 v14, -1\nds_write_b32 v13, v14")
        A(f"s_cmp_ge_u32 s26, 2\ns_cselect_b32 s4, s{KBIM}, s{KBRE}\ns_cselect_b32 s5, s{KBIM+1}, s{KBRE+1}")
        srd(12, 4, 2 * MB)
        A("v_mov_b32 v2, v4")
        A("v_lshrrev_b32 v10, 2, v1\nv_lshrrev_b32 v11, 4, v1\nv_sub_u32 v11, 0, v11\nv_xor_b32 v11, v11, v1\nv_and_b32 v11, 3, v11")
        A("s_and_b32 s4, s26, 1\ns_lshl_b32 s4, s4, 4\nv_add_u32 v10, s4, v10\nv_lshlrev_b32 v10, 11, v10\nv_lshl_add_u32 v3, v11, 4, v10")
        A("s_lshl_b32 s22, s26, 12\ns_lshl_b32 s23, s26, 10")
        A("s_waitcnt vmcnt(1)")
    if P['dbg'] == 5: stamp(0, 3, 16, 25, 4)
    ln_phase(kind)
    srd(68, KCIM if kind else KCRE, 2 * MB); srd(72, KWD, 3584 * 2048)
    A("s_lshl_b32 s3, s2, 3\ns_add_u32 s3, s3, s25\ns_mul_i32 s76, s3, 3584\ns_lshl_b32 s3, s2, 2\ns_add_u32 s3, s3, s26\ns_lshl_b32 s77, s3, 11\ns_sub_u32 s78, 6, s26")
    if kind == 1:
        A("s_cmp_lg_u32 s26, 3\ns_cbranch_scc1 L2_notk\ns_mov_b32 s3, s79")
        ticket_finish(96, 5, 16, 0, "L2_tk", TKL)
        A("L2_notk:")
    if P['dbg'] == 5: stamp(1, 3, 16, 25, 4)
    A("s_waitcnt vmcnt(0) lgkmcnt(0)")
    if kind == 0:
        A("s_barrier\ns_cmp_lg_u32 s26, 0\ns_cbranch_scc1 L2_nosig\ns_lshl_b32 s29, s7, 5\nv_mov_b32 v10, 1\ns_mov_b64 exec, 1\nbuffer_atomic_add v10, off, s[96:99], s29 sc1\ns_mov_b64 exec, -1\nL2_nosig:")
        ticket_read(TKL, False)
    else:
        ticket_read(TKL)
    if not P['tk1']: A("s_mov_b32 s6, s2")
    if P['dbg'] == 5: stamp(2, 3, 16, 25, 4)
    A("s_and_b32 s27, s6, 7\ns_lshl_b32 s27, s27, 2\ns_bfe_u32 s3, s6, 0x20003\ns_add_u32 s27, s27, s3\ns_lshr_b32 s28, s6, 5")
    if kind == 0: A("s_mul_i32 s20, s27, 224")
    else: A(f"s_lshl_b32 s20, s28, 14\ns_add_u32 s20, s20, {WS_XN}\ns_lshl_b32 s21, s27, 16")
    def late_setup():
        A(f"s_lshl_b32 s67, s27, 11\ns_add_u32 s67, s67, {WS_TBUF}")
        A(f"s_lshl_b32 s65, s28, 1\ns_lshr_b32 s3, s26, 1\ns_add_u32 s65, s65, s3\ns_lshl_b32 s65, s65, 14\ns_and_b32 s3, s26, 1\ns_lshl_b32 s3, s3, 11\ns_add_u32 s65, s65, s3\ns_add_u32 s65, s65, {WS_ACT}")
        A(f"s_mul_i32 s64, s27, 7\ns_add_u32 s64, s64, {128 + (5 if kind else 0)}")
        if kind == 0: pf3_off(6, P['pfa'])
        else:
            A("v_and_b32 v10, 15, v1\ns_lshl_b32 s3, s27, 5\nv_add_u32 v10, s3, v10\nv_lshlrev_b32 v10, 1, v10")
            for k, kp in enumerate((KLRE, KLIM, KLDT)):
                srd(16, kp, 2048)
                for b in range(2): A(f"buffer_load_ushort v{80+3*b+k}, v10, s[16:19], 0 offen offset:{32*b}")
    pfb = P['pfb'] if PF3 else 0
    WP = P['wpre']
    if kind == 0:
        for sl in range(WP): E(dma(sl))
        late_setup()
        A("s_barrier")
        for sl in range(WP, 4): E(dma(sl))
        A("s_waitcnt vmcnt(12)\ns_barrier")
        for _ in range(pfb): touch()
    else:
        for sl in range(4): E(dma(sl, 'b'))
        A("s_cmp_lg_u32 s26, 0\ns_cbranch_scc1 L2_xgot\ns_lshl_b32 s29, s28, 5\ns_mov_b32 s5, 0\nL2_xpoll:")
        A(f"s_sleep {P['slp']}\nbuffer_load_dword v10, off, s[96:99], s29 sc1\ns_waitcnt vmcnt(0)\nv_readfirstlane_b32 s3, v10\ns_cmp_ge_u32 s3, 32\ns_cbranch_scc1 L2_xgot\ns_add_u32 s5, s5, 1\ns_cmp_lt_u32 s5, 0x40000\ns_cbranch_scc1 L2_xpoll")
        A("L2_xgot:\ns_barrier")
        if P['dbg'] == 5: stamp(3, 3, 16, 25, 4)
        E(dma(0, 'a')); E(dma(1, 'a'))
        late_setup()
        A("s_waitcnt vmcnt(10)\ns_barrier")
    npre = P['pfa'] + P['pfb']
    stamp(1, 1, 16, 25, 0)
    first_reads()
    A("s_mov_b32 s24, 7")
    if kind == 0:
        stage(0, True, 2*ND + pfb, czero=True)
        stage(1, True, 2*ND + pfb)
    else:
        stage(0, True, 10, early=2, dslot=3, czero=True, epart='a', dpart='a')
        stage(1, True, 9, early=0)
    A(f"s_branch L2_mid{kind}")
    A(f".p2align 4\nL2_loop{kind}:")
    if P['dbg'] == 2 and kind == 0: stamp(7, 3, 68, 26, 0, dyn=24)
    q.forget()
    if P['pf2']:
        A(f"s_cmp_lg_u32 s24, s78\ns_cbranch_scc1 L2_npf{kind}")
        A("buffer_load_dword v92, v94, s[72:75], s76 offen\nbuffer_load_dword v93, v95, s[68:71], s77 offen")
        A(f"L2_npf{kind}:")
    if PF3 and npre < 8:
        A(f"s_cmp_lt_u32 s24, {npre - 1}\ns_cbranch_scc1 L2_npf3")
        touch()
        A("L2_npf3:")
    for s in range(4):
        if s == 2:
            A(f"L2_mid{kind}:"); q.forget()
        stage(s, True, 2*ND)
    A(f"s_sub_u32 s24, s24, 1\ns_cmp_lg_u32 s24, 0\ns_cbranch_scc1 L2_loop{kind}")
    q.forget()
    fill = ssm_params() if kind == 1 else []
    c0 = -2 * 0.7978845608028654 * LOG2E
    T = 16
    fill += ("v_and_b32 v12, 3, v1\nv_bfe_u32 v13, v1, 3, 1\nv_lshl_or_b32 v12, v13, 2, v12\nv_bfe_u32 v13, v1, 2, 1\nv_lshl_or_b32 v12, v13, 3, v12\n"
             "v_and_b32 v13, 48, v1\nv_or_b32 v12, v12, v13\nv_lshlrev_b32 v10, 4, v12\nv_xor_b32 v11, 128, v10\nv_add_u32 v11, 1024, v11\n"
             f"v_and_b32 v12, 15, v1\nv_lshlrev_b32 v12, 4, v12\nv_add_u32 v13, {G1_SCR}, v12\ns_lshl_b32 s3, s26, 8\nv_add_u32 v14, s3, v13").split('\n')
    nf = 4 if kind == 1 else 1
    stage(0, False, 2*ND, fill=fill, nfill=nf)
    stage(1, False, 0, fill=fill, nfill=nf, post_bar=("s_setprio 2" if kind == 1 else None))
    for x in fill: A(x)
    if kind == 1: A("v_and_b32 v86, 7, v1\nv_lshlrev_b32 v86, 5, v86\nbuffer_load_dword v87, v86, s[96:99], 0 offen sc1")
    stage(2, False, 0, bar=False); stage(3, False, 0, last=True)
    stamp(2 + kind, 1, 16, 26, 0)
    A(f"v_mov_b32 v{T+20}, {fh(c0*0.044715)}\nv_mov_b32 v{T+21}, {fh(c0)}")
    if kind == 0:
        NPK[0] = P['npk'] & 1
        for j in range(5): gelu_pair(2*j, 2*j+1, T)
        NPK[0] = 0
        stamp(4, 1, 16, 26, 0)
        if P['ref']:
            A("s_cmp_lg_u32 s26, 0\ns_cbranch_scc1 L2_r3\nv_mov_b32 v16, s100")
            if P['ref'] == 2: A("buffer_load_dword v16, off, s[96:99], 0 offset:8 sc1\ns_waitcnt vmcnt(0)\nv_not_b32 v16, v16")
            A(f"s_lshl_b32 s3, s2, 7\ns_add_u32 s3, s3, {WS_STAMP + 32768}\ns_mov_b64 exec, 1\nbuffer_store_dword v16, off, s[8:11], s3\ns_mov_b64 exec, -1\nL2_r3:")
        return
    def seq(b, part): return [acc(4 + 2*b + part, i) + r for i in range(4) for r in range(4)]
    cur = {b: (seq(b,0)[0], seq(b,1)[0]) for b in range(2)}
    NPK[0] = (P['npk'] >> 1) & 1
    for j in range(1, 8):
        nx = {b: (48 + 8*(j&1) + 4*b, 50 + 8*(j&1) + 4*b) for b in range(2)}
        for b in range(2):
            A(pk('fma', nx[b][0], pr(b,0), cur[b][0], seq(b,0)[2*j], sel='hnn')); A(pk('fma', nx[b][1], pr(b,0), cur[b][1], seq(b,1)[2*j], sel='hnn'))
        for b in range(2):
            A(pk('fma', nx[b][0], pr(b,2), cur[b][1], nx[b][0], sel='hnn', neg=[1,0,0])); A(pk('fma', nx[b][1], pr(b,2), cur[b][0], nx[b][1], sel='hnn'))
        cur = nx
    for b in range(2):
        er, ei = cur[b]
        A(f"v_fma_f32 v{48+2*b}, v{pr(b,0)}, v{er}, v{er+1}\nv_fma_f32 v{49+2*b}, v{pr(b,0)}, v{ei}, v{ei+1}")
    for b in range(2):
        er, ei = cur[b]
        A(f"v_fma_f32 v{48+2*b}, -v{pr(b,2)}, v{ei}, v{48+2*b}\nv_fmac_f32 v{49+2*b}, v{pr(b,2)}, v{er}")
    for k in range(4): A(f"v_mov_b32 v{52+k}, v{48+k}")
    for k in range(4): A(f"v_permlane16_swap_b32 v{48+k}, v{52+k}")
    cma2([(56+2*b, pr(b,4), 48+2*b, 52+2*b, 72+2*b) for b in range(2)])
    for k in range(4): A(f"v_mov_b32 v{60+k}, v{56+k}")
    for k in range(4): A(f"v_permlane32_swap_b32 v{56+k}, v{60+k}")
    cma2([(64+2*b, pr(b,6), 56+2*b, 60+2*b, 72+2*b) for b in range(2)])
    for k in range(4): A(f"v_min_u32 v{64+k}, -2, v{64+k}")
    A("s_mov_b64 exec, 0xffff\nds_write_b128 v14, v[64:67]\ns_mov_b64 exec, -1")
    A("v_and_b32 v15, 32, v1\nv_cmp_ne_u32 vcc, 0, v15\nv_mov_b32 v15, 0")
    for k in range(4): A(f"v_cndmask_b32 v{68+k}, v15, v{56+k}, vcc")
    cma2([(60+2*b, pr(b,4), 68+2*b, 48+2*b, 72+2*b) for b in range(2)])
    A("v_and_b32 v15, 16, v1\nv_cmp_ne_u32 vcc, 0, v15")
    for k in range(4): A(f"v_cndmask_b32 v{68+k}, v{68+k}, v{60+k}, vcc")
    NPK[0] = 0
    A("s_mov_b32 s5, 0\nL2_cchk:\ns_waitcnt vmcnt(0)\nv_cmp_gt_u32 vcc, 32, v87\ns_cbranch_vccz L2_lspin")
    A("buffer_load_dword v87, v86, s[96:99], 0 offen sc1\ns_add_u32 s5, s5, 1\ns_cmp_lt_u32 s5, 0x40000\ns_cbranch_scc1 L2_cchk")
    A("L2_lspin:")
    for w in range(4): A(f"ds_read_b128 v[{48+4*w}:{51+4*w}], v13 offset:{256*w}")
    A("s_waitcnt lgkmcnt(0)\nv_max_u32 v72, v48, v49")
    for k in range(2, 16, 2): A(f"v_max3_u32 v72, v72, v{48+k}, v{49+k}")
    A("v_cmp_eq_u32 vcc, -1, v72\ns_cbranch_vccnz L2_lspin")
    A("s_cmp_lg_u32 s26, 0\ns_cbranch_scc1 L2_nopub")
    for w in range(1, 4):
        cma2([(64+2*b, pr(b,8), (48 if w == 1 else 64)+2*b, 48+4*w+2*b, 72+2*b) for b in range(2)])
    for k in range(4): A(f"v_min_u32 v{64+k}, -2, v{64+k}")
    A("s_lshl_b32 s3, s28, 8\ns_add_u32 s3, s3, s67\ns_mov_b64 exec, 0xffff")
    A("buffer_store_dwordx4 v[64:67], v12, s[8:11], s3 offen sc1\ns_mov_b64 exec, -1")
    A("L2_nopub:")
    stamp(6, 1, 76, 26, 0)
    for b in range(2):
        cf = pr(b,12)
        for t in range(0, 16, 4):
            for u in range(2):
                re = seq(b,0)[t+2*u]
                A(pk('mul', 72+4*u, cf, re, sel='ln')); A(pk('mul', 74+4*u, cf, re, sel='hn'))
            for u in range(2):
                re, im = seq(b,0)[t+2*u], seq(b,1)[t+2*u]
                A(pk('fma', re, cf, im, 72+4*u, sel='hnn', neg=[1,0,0])); A(pk('fma', im, cf, im, 74+4*u, sel='lnn', neg=[1,0,1]))
        A(f"v_sub_f32 v72, 0, v{pr(b,2)}")
        for t in range(0, 16, 2):
            re, im = seq(b,0)[t], seq(b,1)[t]
            A(f"v_fmac_f32 v{re+1}, v{pr(b,0)}, v{re}\nv_fmac_f32 v{im+1}, v{pr(b,0)}, v{im}")
        for t in range(0, 16, 2):
            re, im = seq(b,0)[t], seq(b,1)[t]
            A(f"v_fmac_f32 v{re+1}, v{pr(b,2)}, v{im}\nv_fmac_f32 v{im+1}, v72, v{re}")
    gelu_pair(0, 1, T)
    gelu_pair(2, 3, T)
    stamp(7, 1, 76, 26, 0)
    for k in range(4): A(f"v_mov_b32 v{64+k}, 0")
    A("s_cmp_eq_u32 s28, 0\ns_cbranch_scc1 L2_nocarry")
    A("s_sub_u32 s4, s28, 1\ns_mov_b32 s5, 0")
    TB = 16
    A("L2_poll:")
    for j in range(7):
        A(f"s_min_u32 s3, s4, {j}\ns_lshl_b32 s3, s3, 8\ns_add_u32 s3, s3, s67")
        A(f"buffer_load_dwordx4 v[{TB+4*j}:{TB+4*j+3}], v12, s[8:11], s3 offen sc1")
    A(f"s_waitcnt vmcnt(0)\nv_max_u32 v72, v{TB}, v{TB+1}")
    for k in range(2, 28, 2): A(f"v_max3_u32 v72, v72, v{TB+k}, v{TB+k+1}")
    A("v_cmp_eq_u32 vcc, -1, v72\ns_cbranch_vccz L2_got\ns_sleep 1\ns_add_u32 s5, s5, 1\ns_cmp_lt_u32 s5, 0x40000\ns_cbranch_scc1 L2_poll")
    A("L2_got:")
    for k in range(4): A(f"v_mov_b32 v{64+k}, v{TB+k}")
    for j in range(1, 7):
        A(f"s_cmp_le_u32 s28, {j}\ns_cbranch_scc1 L2_nocarry")
        cma2([(64+2*b, pr(b,10), 64+2*b, TB+4*j+2*b, 72+2*b) for b in range(2)])
    A("L2_nocarry:")
    for w in range(3):
        A(f"s_cmp_le_u32 s26, {w}\ns_cbranch_scc1 L2_hw")
        cma2([(64+2*b, pr(b,8), 64+2*b, 48+4*w+2*b, 72+2*b) for b in range(2)])
    A("L2_hw:")
    cma2([(64+2*b, pr(b,14), 64+2*b, 68+2*b, 72+2*b) for b in range(2)])
    for b in range(2): A(f"v_mul_f32 v{72+2*b}, v{pr(b,12)}, v{64+2*b}\nv_mul_f32 v{73+2*b}, v{pr(b,13)}, v{64+2*b}")
    for b in range(2): A(f"v_fma_f32 v{49+4*b}, -v{pr(b,13)}, v{65+2*b}, v{72+2*b}\nv_fma_f32 v{51+4*b}, -v{pr(b,12)}, v{65+2*b}, -v{73+2*b}")
    A("s_lshr_b32 s66, s27, 1\ns_lshl_b32 s66, s66, 18\ns_and_b32 s3, s27, 1\ns_lshl_b32 s3, s3, 13\ns_add_u32 s66, s66, s3\ns_add_u32 s66, s66, s65")
    n = 0
    for t in range(0, 16, 2):
        pv = {b: ((48+4*b, 50+4*b) if t == 0 else (seq(b,0)[t-2], seq(b,1)[t-2])) for b in range(2)}
        for b in range(2):
            re, im = seq(b,0)[t], seq(b,1)[t]
            A(pk('fma', re, pr(b,0), pv[b][0], re, sel='nhn')); A(pk('fma', im, pr(b,0), pv[b][1], im, sel='nhn'))
        for b in range(2):
            re, im = seq(b,0)[t], seq(b,1)[t]
            A(pk('fma', re, pr(b,2), pv[b][1], re, sel='nhn')); A(pk('fma', im, pr(b,2), pv[b][0], im, sel='nhn', neg=[1,0,0]))
        if t in (6, 14):
            h = t >> 3
            for b in range(2):
                for part in range(2):
                    sq = seq(b, part)
                    o = 16 + 4 * n; n += 1
                    A(f"s_add_u32 s3, s66, {part*16*262144 + b*4096}")
                    for k in range(4): A(f"v_cvt_pk_bf16_f32 v{o+k}, v{sq[8*h+2*k]}, v{sq[8*h+2*k+1]}")
                    A(f"buffer_store_dwordx4 v[{o}:{o+3}], v{10+h}, s[8:11], s3 offen sc1")
    stamp(5, 1, 72, 26, 0)

def g2():
    NA = 32 + XO; NBS = 56 - XO
    FR = [32, 64]; ACCO = 96; ACCY = 160; XR = 224; XA = 28
    XL = 131072
    kstart('k2_g2_kernel')
    A("s_cmp_ge_u32 s2, 256\ns_cbranch_scc1 L3_end")
    A("s_load_dwordx16 s[32:47], s[0:1], 0\ns_load_dwordx16 s[48:63], s[0:1], 64")
    A("v_and_b32 v2, 63, v0\nv_lshrrev_b32 v1, 6, v0\nv_readfirstlane_b32 s26, v1")
    def decode():
        A("s_and_b32 s27, s6, 1\ns_bfe_u32 s28, s6, 0x20001\ns_lshr_b32 s29, s6, 3")
        A("s_and_b32 s30, s28, 1\ns_lshl_b32 s30, s30, 3\ns_and_b32 s31, s29, 7\ns_add_u32 s30, s30, s31")
        A("s_lshr_b32 s31, s28, 1\ns_lshl_b32 s31, s31, 2\ns_lshr_b32 s3, s29, 3\ns_add_u32 s31, s31, s3")
    def exch(wreg):
        A(f"s_lshl_b32 s4, s30, 3\ns_add_u32 s4, s4, s31\ns_lshl_b32 s70, s4, 16\ns_lshl_b32 s3, s{wreg}, 14\ns_add_u32 s70, s70, s3\ns_add_u32 s70, s70, {WS_OBUF}")
        A(f"s_lshl_b32 s71, s4, 6\ns_lshl_b32 s3, s{wreg}, 4\ns_add_u32 s71, s71, s3\ns_add_u32 s71, s71, {WS_FLAGS}")
        A(f"s_lshr_b32 s3, s{wreg}, 1\ns_add_u32 s3, s3, {NA}\ns_and_b32 s3, s3, 3\ns_lshl_b32 s3, s3, 15\ns_and_b32 s4, s{wreg}, 1\ns_lshl_b32 s4, s4, 14\ns_add_u32 s72, s3, s4")
    def getid():
        if P['tk2']: ticket_read(XL)
        else: A("s_mov_b32 s6, s2")
        decode()
    def fold():
        if P['dbg'] == 10:
            lab = f"Lf_{len(A.lines)}"
            A(f"s_cmp_lg_u32 s26, 0\ns_cbranch_scc1 {lab}\ns_lshl_b32 s3, s2, 7\ns_add_u32 s3, s3, {WS_STAMP + 32768}\nbuffer_load_dword v5, off, s[8:11], s3 sc1\ns_waitcnt vmcnt(0)\nv_readfirstlane_b32 s4, v5")
            A(f"{lab}_s:\ns_memrealtime s[20:21]\ns_waitcnt lgkmcnt(0)\ns_sub_u32 s3, s20, s4\ns_cmp_lt_u32 s3, {P['tfix']}\ns_cbranch_scc1 {lab}_s\n{lab}:")
            return
        if P['dbg'] != 9: return
        lab = f"Lf_{len(A.lines)}"
        A(f"s_cmp_lg_u32 s26, 0\ns_cbranch_scc1 {lab}\ns_waitcnt vmcnt(0)")
        srd(20, KDBG, 256)
        offs = [1*32768+0, 1*32768+16, 1*32768+32, 1*32768+80, 2*32768+0, 2*32768+16, 2*32768+32, 2*32768+48]
        A("v_mov_b32 v4, 0")
        for l, o in enumerate(offs): A(f"s_mov_b32 s3, {o}\nv_writelane_b32 v4, s3, {l}")
        A(f"s_lshl_b32 s3, s2, 7\ns_add_u32 s3, s3, {WS_STAMP}\ns_mov_b64 exec, 0xff\nbuffer_load_dword v5, v4, s[8:11], s3 offen sc1\nv_lshlrev_b32 v6, 3, v2\ns_waitcnt vmcnt(0)")
        A("v_not_b32 v7, v5\nbuffer_atomic_umax v5, v6, s[20:23], 0 offen\nbuffer_atomic_umax v7, v6, s[20:23], 0 offen offset:4\ns_mov_b64 exec, -1")
        A(f"{lab}:")
    A("s_cmp_ge_u32 s26, 4\ns_cbranch_scc1 L3_loader")
    A("s_waitcnt lgkmcnt(0)")
    srd(8, KWS, WS_SIZE)
    if P['tk2']:
        A("s_cmp_lg_u32 s26, 0\ns_cbranch_scc1 L3_notk")
        ticket_issue(8, 7, WS_CNT2)
        ticket_finish(8, 7, WS_CNT2, 0, "L3_tk", XL)
        A("L3_notk:")
    stamp(0, 2, 16, 26, 1)
    getid()
    A("s_and_b32 s64, s26, 1\ns_lshr_b32 s65, s26, 1")
    A("v_lshrrev_b32 v6, 4, v2\nv_bfe_u32 v7, v2, 2, 2\nv_and_b32 v8, 3, v2")
    A("v_and_b32 v5, 15, v2\ns_lshl_b32 s3, s30, 7\ns_lshl_b32 s4, s64, 6\ns_add_u32 s3, s3, s4\nv_add_u32 v5, s3, v5")
    A("s_lshl_b32 s3, s31, 7\ns_lshl_b32 s4, s65, 6\ns_add_u32 s3, s3, s4\nv_lshl_add_u32 v9, v6, 2, s3")
    A("v_lshlrev_b32 v27, 12, v5\nv_lshl_add_u32 v27, v9, 2, v27")
    ST = XR; DP = XR + 8
    A("s_cmp_lg_u32 s27, 0\ns_cbranch_scc1 L3_nost")
    srd(16, KDSK, 2048)
    A(f"v_lshlrev_b32 v5, 3, v5\nv_lshlrev_b32 v9, 1, v9\ns_mov_b32 s3, {WS_STATS}")
    for i in range(4): A(f"buffer_load_dwordx2 v[{ST+2*i}:{ST+1+2*i}], v5, s[8:11], s3 offen offset:{128*i}")
    for n in range(4): A(f"buffer_load_dwordx2 v[{DP+2*n}:{DP+1+2*n}], v9, s[16:19], 0 offen offset:{32*n}")
    A("L3_nost:")
    A("v_lshrrev_b32 v9, 1, v6\nv_lshlrev_b32 v9, 12, v9\ns_lshl_b32 s3, s64, 11\nv_add_u32 v9, s3, v9")
    A("v_lshrrev_b32 v3, 1, v8\nv_lshl_add_u32 v9, v3, 10, v9")
    A("v_and_b32 v4, 1, v6\nv_lshl_or_b32 v4, v4, 2, v7")
    A("v_lshl_or_b32 v5, v3, 3, v4\nv_lshl_add_u32 v9, v5, 4, v9")
    A("v_and_b32 v5, 1, v8\nv_lshl_add_u32 v10, v5, 3, v9\nv_xor_b32 v11, 128, v10")
    A("v_lshl_add_u32 v9, v6, 3, v7\nv_lshlrev_b32 v9, 8, v9\nv_lshl_add_u32 v9, v8, 3, v9\nv_add_u32 v9, 16384, v9")
    for n in range(4):
        A(f"s_lshl_b32 s3, s65, 2\ns_add_u32 s3, s3, {n}\nv_xor_b32 v5, s3, v4\nv_lshl_add_u32 v{12+n}, v5, 5, v9")
    A("v_and_b32 v5, 15, v2\nv_and_b32 v9, 7, v2\nv_xor_b32 v9, v9, v6\nv_lshlrev_b32 v9, 4, v9\nv_lshl_add_u32 v9, v5, 7, v9")
    A("s_lshl_b32 s3, s65, 13\ns_add_u32 s3, s3, 16384\nv_add_u32 v16, s3, v9\nv_xor_b32 v17, 64, v16")
    for r in range(8): A(f"v_add_u32 v{18+r}, 0x10000, v{10+r}")
    A("v_and_b32 v3, 15, v2\nv_lshrrev_b32 v4, 1, v6\ns_lshl_b32 s3, s65, 3\nv_or_b32 v4, s3, v4\nv_xor_b32 v4, v4, v3\nv_lshlrev_b32 v4, 4, v4")
    A(f"v_lshl_add_u32 v4, v3, 8, v4\nv_and_b32 v3, 1, v6\nv_lshl_add_u32 v4, v3, 3, v4\ns_lshl_b32 s3, s64, 14\ns_add_u32 s3, s3, {XL}\nv_add_u32 v4, s3, v4")
    for n in range(4): A(f"v_xor_b32 v{XA+n}, {32*n}, v4")
    exch(26)
    for r in range(0, 64, 2): A(f"v_pk_mov_b32 v[{ACCO+r}:{ACCO+r+1}], 0, 0")
    q = LQ()
    def reads(typ, slot, hh, buf):
        ab = 10 + 8 * (slot >> 1); so = (slot & 1) * 32768; f = FR[buf]
        def ra(i):
            off = so + hh * 8192 + 256 * i
            return [((buf, 'a', i, 0), f"ds_read_b64_tr_b16 v[{f+4*i}:{f+4*i+1}], v{ab} offset:{off}"),
                    ((buf, 'a', i), f"ds_read_b64_tr_b16 v[{f+4*i+2}:{f+4*i+3}], v{ab+1} offset:{off}")]
        def rb(n):
            g = f + 16 + 4 * n
            if typ == 'o':
                off = so + hh * 8192
                return [((buf, 'b', n, 0), f"ds_read_b64_tr_b16 v[{g}:{g+1}], v{ab+2+n} offset:{off}"),
                        ((buf, 'b', n), f"ds_read_b64_tr_b16 v[{g+2}:{g+3}], v{ab+2+n} offset:{off+1024}")]
            return [((buf, 'b', n), f"ds_read_b128 v[{g}:{g+3}], v{ab+6+hh} offset:{so + 2048*n}")]
        return ra(0) + rb(0) + ra(1) + ra(2) + ra(3) + rb(1) + rb(2) + rb(3)
    def half(typ, buf, rds, bar):
        accb = ACCO if typ == 'o' else ACCY
        f = FR[buf]
        for n in range(4):
            for i in range(4):
                k = n * 4 + i
                if bar and k == 4:
                    A("s_waitcnt lgkmcnt(0)"); q.all_done(); A("s_barrier")
                if k == 0: q.wait((buf, 'a', 3), (buf, 'b', 0))
                elif k == 4: q.wait((buf, 'b', 1))
                elif k == 8: q.wait((buf, 'b', 3))
                ii = 3 - i if n & 1 else i
                a = accb + (n * 4 + ii) * 4
                A(f"v_mfma_f32_16x16x32_bf16 v[{a}:{a+3}], v[{f+16+4*n}:{f+16+4*n+3}], v[{f+4*ii}:{f+4*ii+3}], v[{a}:{a+3}]")
                if bar and k < 4: continue
                left = 15 - k
                cnt = (len(rds) + left - 1) // left if left > 0 else len(rds)
                for _ in range(min(cnt, len(rds))):
                    t, x = rds.pop(0); q.issue(t, x)
        assert not rds
    A("s_cmp_lg_u32 s27, 0\ns_cbranch_scc1 L3_typeB")
    for r in range(0, 64, 2): A(f"v_pk_mov_b32 v[{ACCY+r}:{ACCY+r+1}], 0, 0")
    A("s_barrier")
    stamp(1, 2, 64, 26, 0)
    for t, x in reads('y', 0, 0, 0): q.issue(t, x)
    A("s_mov_b32 s24, 7")
    A(".p2align 4\nL3_yloop:")
    A(f"s_cmp_eq_u32 s24, {P['pz']}\ns_cbranch_scc1 L3_pause\nL3_back:")
    q.forget()
    for s in range(4):
        half('y', 0, reads('y', s, 1, 1), False)
        half('y', 1, reads('y', (s+1) & 3, 0, 0), True)
    A("s_sub_u32 s24, s24, 1\ns_cmp_lg_u32 s24, 0\ns_cbranch_scc1 L3_yloop")
    q.forget()
    for s in range(4):
        half('y', 0, reads('y', s, 1, 1), False)
        half('y', 1, reads('y' if s < 3 else 'o', (s+1) & 3, 0, 0), True)
    stamp(6, 2, 4, 26, 0)
    A(f"s_mov_b32 s24, {XO}\ns_branch L3_oloop")
    A("L3_pause:\ns_waitcnt vmcnt(0) lgkmcnt(0)")
    stamp(4, 2, 4, 26, 0)
    XB = FR[1]; DF = XR + 16; TT = XR + 20
    for n in range(4):
        for i in range(4): A(f"ds_read_b64 v[{XB+(n*4+i)*2}:{XB+(n*4+i)*2+1}], v{XA+n} offset:{4096*i}")
        if n == 2: A("s_waitcnt lgkmcnt(8)")
    for i in range(4): A(f"v_mul_f32 v{ST+2*i}, v{ST+2*i}, v{ST+1+2*i}")
    for n in range(4):
        for hw in range(2): A(f"v_lshlrev_b32 v{DF+2*hw}, 16, v{DP+2*n+hw}\nv_and_b32 v{DF+1+2*hw}, 0xffff0000, v{DP+2*n+hw}")
        A(f"s_waitcnt lgkmcnt({12-4*n})")
        for i in range(4):
            r = XB + (n * 4 + i) * 2; a = ACCY + (n * 4 + i) * 4; t = TT + 4 * (i & 1)
            for hw in range(2): A(f"v_lshlrev_b32 v{t+2*hw}, 16, v{r+hw}\nv_and_b32 v{t+2*hw+1}, 0xffff0000, v{r+hw}")
            for hw in range(2): A(pk('fma', t+2*hw, t+2*hw, ST+2*i, ST+2*i, sel='nhl', neg=[0,0,1]))
            for hw in range(2): A(pk('fma', a+2*hw, t+2*hw, DF+2*hw, a+2*hw))
    stamp(5, 2, 4, 26, 0)
    A("s_nop 1\ns_branch L3_back")
    A("L3_typeB:")
    A("s_barrier")
    stamp(1, 2, 64, 26, 0)
    for t, x in reads('o', 0, 0, 0): q.issue(t, x)
    A(f"s_mov_b32 s24, {NBS}")
    A(".p2align 4\nL3_oloop:")
    q.forget()
    for s in range(4):
        half('o', 0, reads('o', s, 1, 1), False)
        A("s_sub_u32 s24, s24, 1\ns_cmp_eq_u32 s24, 0\ns_cbranch_scc1 L3_otail")
        half('o', 1, reads('o', (s+1) & 3, 0, 0), True)
    A("s_branch L3_oloop")
    A("L3_otail:")
    A("s_waitcnt lgkmcnt(0)"); q.all_done()
    A("s_cmp_lg_u32 s27, 0\ns_cbranch_scc1 L3_nox")
    for n in range(4):
        for i in range(4): A(f"ds_read_b64 v[{XR+(n*4+i)*2}:{XR+(n*4+i)*2+1}], v{XA+n} offset:{4096*i}")
        if n == 2: A("s_waitcnt lgkmcnt(8)")
    A("L3_nox:")
    half('o', 1, [], False)
    stamp(2, 2, 4, 26, 0)
    A("v_lshlrev_b32 v5, 4, v2\nv_mov_b32 v9, 0")
    A("s_cmp_eq_u32 s27, 0\ns_cbranch_scc1 L3_finish")
    for k in range(16):
        if k % 4 == 0 and k: A("s_add_u32 s70, s70, 4096")
        A(f"buffer_store_dwordx4 v[{ACCO+4*k}:{ACCO+4*k+3}], v5, s[8:11], s70 offen offset:{1024*(k%4)} sc1")
    A("v_mov_b32 v3, 1\ns_waitcnt vmcnt(0)\ns_mov_b64 exec, 1")
    A("buffer_store_dword v3, v9, s[8:11], s71 offen sc1\ns_mov_b64 exec, -1")
    stamp(3, 2, 4, 26, 0)
    fold()
    A("s_branch L3_end")
    A("L3_finish:")
    srd(16, KOUT, 8 * MB)
    A(f"v_add_u32 v5, s72, v5\nv_mov_b32 v28, {fh(-LOG2E)}\ns_waitcnt lgkmcnt(0)\ns_barrier")
    for k in range(8): A(f"ds_read_b128 v[{32+4*k}:{35+4*k}], v5 offset:{1024*k}")
    for n in range(4):
        for i in range(4):
            k = n * 4 + i
            o = ACCO + 4*k; y = ACCY + 4*k; p = 32 + 4*k; r = XR + 2*k
            if k < 8: A(f"ds_read_b128 v[{64+4*k}:{67+4*k}], v5 offset:{1024*(k+8)}\ns_waitcnt lgkmcnt(8)")
            else: A(f"s_waitcnt lgkmcnt({15-k})")
            for e in (0, 2): A(pk('add', o+e, o+e, p+e))
            for e in (0, 2): A(pk('mul', p+e, o+e, 28, sel='nl'))
            for e in range(4): A(f"v_exp_f32 v{p+e}, v{p+e}")
            for e in (0, 2): A(pk('mul', o+e, o+e, y+e))
            for e in (0, 2): A(pk('add', p+e, p+e, '1.0', sel='nl'))
            for e in range(4): A(f"v_rcp_f32 v{p+e}, v{p+e}")
            for hw in range(2): A(f"v_lshlrev_b32 v{y+2*hw}, 16, v{r+hw}\nv_and_b32 v{y+2*hw+1}, 0xffff0000, v{r+hw}")
            for e in (0, 2): A(pk('fma', y+e, o+e, p+e, y+e))
            A(f"s_mov_b32 s3, {65536*i}")
            A(f"buffer_store_dwordx4 v[{y}:{y+3}], v27, s[16:19], s3 offen offset:{64*n}{OSTF}")
    stamp(3, 2, 4, 26, 0)
    fold()
    A("s_branch L3_end")
    A("L3_loader:")
    A("s_sub_u32 s26, s26, 4")
    A("s_lshl_b32 s64, s26, 12\nv_lshlrev_b32 v4, 4, v2\nv_add_u32 v3, s64, v4\nv_mov_b32 v22, 0")
    A("v_lshrrev_b32 v5, 4, v2")
    for j in range(4):
        A(f"v_or_b32 v6, {((j>>1)&1)<<2}, v5\nv_bfe_u32 v7, v2, 1, 3\nv_xor_b32 v7, v7, v6\nv_lshlrev_b32 v7, 5, v7")
        A("v_and_b32 v8, 1, v2\nv_lshl_add_u32 v7, v8, 4, v7")
        A(f"s_lshl_b32 s3, s26, 4\ns_add_u32 s3, s3, {4*j}\nv_add_u32 v9, s3, v5\nv_lshl_add_u32 v{14+j}, v9, 11, v7")
        if j: A(f"v_subrev_u32 v{14+j}, {1024*j}, v{14+j}")
    A("v_and_b32 v6, 15, v2")
    for j in range(4):
        A(f"v_add_u32 v7, {4*j}, v5\nv_xor_b32 v8, v6, v7\nv_lshlrev_b32 v8, 4, v8\nv_lshl_add_u32 v{24+j}, v7, 11, v8")
        if j: A(f"v_subrev_u32 v{24+j}, {1024*j}, v{24+j}")
    A("v_lshrrev_b32 v5, 3, v2\nv_and_b32 v6, 7, v2\nv_xor_b32 v6, v6, v5\nv_lshlrev_b32 v6, 4, v6")
    for j in range(4):
        A(f"s_lshl_b32 s3, s26, 5\ns_add_u32 s3, s3, {8*j}\nv_add_u32 v9, s3, v5\nv_lshl_add_u32 v{10+j}, v9, 11, v6")
        if j: A(f"v_subrev_u32 v{10+j}, {1024*j}, v{10+j}")
    A("s_waitcnt lgkmcnt(0)")
    srd(8, KWS, WS_SIZE); srd(16, KX, 4 * MB)
    A("s_mov_b32 s15, 0x20000\ns_mov_b32 s69, 0")
    getid()
    A(f"s_lshl_b32 s66, s30, 14\ns_add_u32 s66, s66, {WS_ACT}")
    WD = f"s_mov_b32 s12, s{KWD}\ns_and_b32 s13, s{KWD+1}, 0xffff\ns_mov_b32 s14, {3584*2048}\ns_lshl_b32 s67, s31, 8\ns_mov_b32 s68, 131072\n" + '\n'.join(f"v_mov_b32 v{10+j}, v{14+j}" for j in range(4))
    A("s_cmp_lg_u32 s27, 0\ns_cbranch_scc1 L3_lB")
    A(f"s_mov_b32 s12, s{KCRE}\ns_and_b32 s13, s{KCRE+1}, 0xffff\ns_mov_b32 s14, {2*MB}\ns_lshl_b32 s67, s31, 18\ns_mov_b32 s68, 128")
    A(f"s_mov_b32 s65, 0\ns_mov_b32 s24, {NA-4}\ns_branch L3_lgo")
    A("L3_lB:")
    A(WD)
    A(f"s_add_u32 s67, s67, {XO*131072}\ns_add_u32 s66, s66, {NA*262144}\ns_mov_b32 s65, 1000\ns_mov_b32 s24, {NBS-4}")
    A("L3_lgo:")
    def trace():
        if P['dbg'] != 6: return
        A("s_memrealtime s[92:93]\ns_waitcnt lgkmcnt(0)\ns_mov_b32 m0, s94\ns_nop 0\nv_writelane_b32 v40, s92, m0\ns_add_u32 s94, s94, 1")
    def trace_dump():
        if P['dbg'] != 6: return
        A(f"s_lshl_b32 s3, s6, 8\ns_add_u32 s3, s3, {WS_STAMP + 262144}\nv_lshlrev_b32 v41, 2, v2\nbuffer_store_dword v40, v41, s[8:11], s3 offen")
    if P['dbg'] == 6: A("s_mov_b32 s94, 0\nv_mov_b32 v40, 0")
    trace()
    def issue():
        A("s_add_u32 m0, s64, s69")
        for j in range(4): A(f"buffer_load_dwordx4 v3, s[8:11], s66 offen offset:{1024*j} lds")
        A("s_add_u32 m0, m0, 16384\ns_add_u32 s66, s66, 262144")
        for j in range(4): A(f"buffer_load_dwordx4 v{10+j}, s[12:15], s67 offen offset:{1024*j} lds")
        A("s_add_u32 s67, s67, s68\ns_add_u32 s69, s69, 32768\ns_and_b32 s69, s69, 0x1ffff\ns_add_u32 s65, s65, 1")
    issue(); issue()
    exch(26)
    A("s_lshl_b32 s73, s30, 18\ns_lshl_b32 s3, s26, 16\ns_add_u32 s73, s73, s3\ns_lshl_b32 s3, s31, 8\ns_add_u32 s73, s73, s3")
    A(f"s_lshl_b32 s74, s26, 13\ns_add_u32 s74, s74, {XL}")
    A("s_waitcnt vmcnt(8)\ns_barrier")
    trace()
    issue(); issue()
    A("s_cmp_lg_u32 s27, 0\ns_cbranch_scc1 L3_lloop")
    for hh in range(2):
        A(f"s_add_u32 m0, s74, {4096*hh}")
        for j in range(4): A(f"buffer_load_dwordx4 v{24+j}, s[16:19], s73 offen offset:{1024*j} lds")
        A("s_add_u32 s73, s73, 32768")
    for r in range(3):
        A("s_waitcnt vmcnt(24)\ns_barrier"); trace(); issue()
    A("s_sub_u32 s24, s24, 3")
    A(".p2align 4\nL3_lloop:")
    A("s_cmp_eq_u32 s65, 16\ns_cbranch_scc0 L3_ln1")
    A(f"s_mov_b32 s12, s{KCIM}\ns_and_b32 s13, s{KCIM+1}, 0xffff\ns_lshl_b32 s67, s31, 18")
    A("L3_ln1:")
    A("s_cmp_eq_u32 s65, 32\ns_cbranch_scc0 L3_ln2")
    A(WD)
    A("L3_ln2:")
    A("s_waitcnt vmcnt(16)\ns_barrier")
    trace()
    issue()
    A("s_sub_u32 s24, s24, 1\ns_cmp_lg_u32 s24, 0\ns_cbranch_scc1 L3_lloop")
    A("s_waitcnt vmcnt(16)\ns_barrier")
    trace()
    A("s_cmp_eq_u32 s27, 0\ns_cbranch_scc1 L3_ltA")
    A("s_waitcnt vmcnt(8)\ns_barrier"); trace(); A("s_waitcnt vmcnt(0)\ns_barrier"); trace(); trace_dump(); A("s_branch L3_end")
    A("L3_ltA:")
    def obuf_dma():
        for k in range(16):
            if k % 4 == 0:
                A(f"s_add_u32 m0, s72, {1024*k}")
                if k: A("s_add_u32 s70, s70, 4096")
            A(f"buffer_load_dwordx4 v4, s[8:11], s70 offen offset:{1024*(k%4)} sc1 lds")
    A("buffer_load_dword v23, v22, s[8:11], s71 offen sc1")
    A("s_waitcnt vmcnt(9)\ns_barrier"); trace(); A("s_waitcnt vmcnt(0)")
    A("v_readfirstlane_b32 s3, v23\ns_cmp_eq_u32 s3, 1\ns_cbranch_scc0 L3_llate")
    obuf_dma()
    A("s_barrier\ns_branch L3_ldone")
    A("L3_llate:")
    A("s_barrier\ns_mov_b32 s5, 0")
    A("L3_poll:")
    A("buffer_load_dword v23, v22, s[8:11], s71 offen sc1\ns_waitcnt vmcnt(0)\nv_readfirstlane_b32 s3, v23\ns_cmp_eq_u32 s3, 1\ns_cbranch_scc1 L3_got\ns_sleep 1\ns_add_u32 s5, s5, 1\ns_cmp_lt_u32 s5, 0x40000\ns_cbranch_scc1 L3_poll")
    A("L3_got:")
    obuf_dma()
    A("L3_ldone:")
    trace()
    A("s_waitcnt vmcnt(0)"); trace(); A("s_barrier"); trace(); trace_dump()
    A("L3_end:\ns_endpgm")

A.raw(f"; @launch kernel=k1_g1_kernel grid=(256,1,1) block=(512,1,1) lds={G1_LDS}")
A.raw("; @launch kernel=k2_g2_kernel grid=(256,1,1) block=(512,1,1) lds=163840")
A.raw('.amdgcn_target "amdgcn-amd-amdhsa--gfx950"')
A.raw('.text')
assert P['pz'] <= 6
g1(); g2()
A.raw('.section .rodata,"a"')
kdesc('k1_g1_kernel', 256, 102)
kdesc('k2_g2_kernel', 256, 100)
sys.stdout.write(A.text())
```
